```python
import torch

def _softmax(x, axis=-1):
    return torch.softmax(x, dim=axis)

def _gelu(x):
    return torch.nn.functional.gelu(x, approximate='tanh')

def _silu(x):
    return torch.nn.functional.silu(x)

def _sigmoid(x):
    return torch.sigmoid(x)

def _layernorm(x, axis=-1, eps=1e-05):
    m = x.mean(dim=axis, keepdim=True)
    v = x.var(dim=axis, keepdim=True, unbiased=False)
    return (x - m) / torch.sqrt(v + eps)

def _scatter_add(tgt, idx, src, axis=0):
    return tgt.clone().index_add_(axis, idx, src)

def _segment_sum(src, seg, n):
    out = torch.zeros((n,) + src.shape[1:], dtype=src.dtype)
    return out.index_add_(0, seg, src)

def _pad(x, pw):
    flat = tuple((v for pair in reversed(pw) for v in pair))
    return torch.nn.functional.pad(x, flat)
kernel_name = 'adaLN_cond__ssm_conv_s4__dense_activation_silu__prompt'

def setup_inputs():

    _w = lambda a: (lambda t: t.to(torch.bfloat16) if t.is_floating_point() else t)(torch.as_tensor(a))

    def _A_setup():
        B, L, D, N = (1, 2048, 640, 192)
        A_re = -(lambda _x: torch.exp(torch.as_tensor(_x)))((lambda *s: torch.randn(*s, dtype=torch.bfloat16) * 3.2)(D, N))
        A_im = torch.pi * (lambda *s: torch.randn(*s, dtype=torch.bfloat16) * 0.05)(D, N)
        B_re = (lambda *s: torch.randn(*s, dtype=torch.bfloat16) * 0.1)(D, N)
        B_im = (lambda *s: torch.randn(*s, dtype=torch.bfloat16) * 0.1)(D, N)
        C_re = (lambda *s: torch.randn(*s, dtype=torch.bfloat16) * 0.1)(D, N)
        C_im = (lambda *s: torch.randn(*s, dtype=torch.bfloat16) * 0.1)(D, N)
        log_dt = (lambda *s: torch.randn(*s, dtype=torch.bfloat16) * 0.05)(D) * 0.5 - 4.0
        Dskip = (lambda *s: torch.randn(*s, dtype=torch.bfloat16) * 0.05)(D)
        return {'u': _w((lambda *s: torch.randn(*s, dtype=torch.bfloat16) * 0.05)(B, L, D)), 'A_re': _w(A_re), 'A_im': _w(A_im), 'B_re': _w(B_re), 'B_im': _w(B_im), 'C_re': _w(C_re), 'C_im': _w(C_im), 'log_dt': _w(log_dt), 'Dskip': _w(Dskip)}
    _A_in = _A_setup()

    def _B_setup():
        B, S, D, F = (1, 2048, 640, 1536)
        return {'x': _w((lambda *s: torch.randn(*s, dtype=torch.bfloat16) * 0.05)(B, S, D)), 'w1': _w((lambda *s: torch.randn(*s, dtype=torch.bfloat16) * 3.2)(D, F) * D ** (-0.5)), 'w2': _w((lambda *s: torch.randn(*s, dtype=torch.bfloat16) * 0.2)(F, D) * F ** (-0.5))}
    _B_in = _B_setup()
    return {'A_u': _A_in['u'], 'A_A_re': _A_in['A_re'], 'A_A_im': _A_in['A_im'], 'A_B_re': _A_in['B_re'], 'A_B_im': _A_in['B_im'], 'A_C_re': _A_in['C_re'], 'A_C_im': _A_in['C_im'], 'A_log_dt': _A_in['log_dt'], 'A_Dskip': _A_in['Dskip'], 'B_x': _B_in['x'], 'B_w1': _B_in['w1'], 'B_w2': _B_in['w2'], 'c': _w((lambda *s: torch.randn(*s, dtype=torch.bfloat16) * 0.2)(1, 640) * 8.0), 'w_mod': _w((lambda *s: torch.randn(*s, dtype=torch.bfloat16) * 0.2)(640, 6 * 640) * 640 ** (-0.5) * 8.0)}

def reference(A_u, A_A_re, A_A_im, A_B_re, A_B_im, A_C_re, A_C_im, A_log_dt, A_Dskip, B_x, B_w1, B_w2, c, w_mod):

    def _A_ref(u, A_re, A_im, B_re, B_im, C_re, C_im, log_dt, Dskip):
        Bsz, L, D = u.shape
        dt = torch.exp(log_dt)[:, None]
        A = A_re + 1j * A_im
        Bc = B_re + 1j * B_im
        Cc = C_re + 1j * C_im
        logdA = dt * A
        dB = dt * Bc
        l = (lambda x, dt: x.to(dt))(torch.arange(L), A_re.dtype)
        P = torch.exp(logdA[:, :, None] * l[None, None, :])
        K = torch.einsum('dn,dnl,dn->dl', Cc, P, dB).real
        L2 = 2 * L
        Kp = _pad(K, ((0, 0), (0, L)))
        up = (lambda x, *d: x.permute(*d))(u, 0, 2, 1)
        up = _pad(up, ((0, 0), (0, 0), (0, L)))
        Kf = (lambda x, axes=(-2, -1): torch.fft.rfft2(x.float(), dim=axes))(Kp[:, None, :], axes=(-2, -1))
        Uf = (lambda x, axes=(-2, -1): torch.fft.rfft2(x.float(), dim=axes))(up[:, :, None, :], axes=(-2, -1))
        Yf = Uf * Kf[None, :, :, :]
        y = (lambda x, s, axes=(-2, -1): torch.fft.irfft2(x, s=s, dim=axes).to(torch.bfloat16))(Yf, (1, L2), axes=(-2, -1))[:, :, 0, :L]
        y = (lambda x, *d: x.permute(*d))(y, 0, 2, 1) + u * Dskip[None, None, :]
        return y

    def _B_ref(x, w1, w2):
        h = torch.einsum('bsd,df->bsf', x, w1)
        h = _silu(h)
        out = torch.einsum('bsf,fd->bsd', h, w2)
        return out
    x = A_u
    mod = (_silu(c) @ w_mod).reshape(c.shape[0], 6, 1, -1)
    sa, ca, ga, sb, cb, gb = (mod[:, 0].clone(), mod[:, 1].clone(), mod[:, 2].clone(), mod[:, 3].clone(), mod[:, 4].clone(), mod[:, 5].clone())
    h = _layernorm(x, axis=-1) * (1 + ca) + sa
    x = x + ga * _A_ref(h, A_A_re, A_A_im, A_B_re, A_B_im, A_C_re, A_C_im, A_log_dt, A_Dskip)
    h = _layernorm(x, axis=-1) * (1 + cb) + sb
    x = x + gb * _B_ref(h, B_w1, B_w2)
    return x
```

```python
import re, sys

class Ins:
    __slots__ = ('text','op','ops','mods','kind','dst','src','label','target','passes','nws','cmt','opaque')
    def __init__(self, text):
        self.text = text
        self.label = None; self.target = None; self.passes = 0; self.nws = 1
        self.dst = set(); self.src = set(); self.kind = ''; self.op=''; self.ops=[]; self.mods=''

_reg = re.compile(r'^-?\|?(?:abs\()?([vas])(?:(\d+)|\[(\d+):(\d+)\])\)?\|?$')
def regs(tok):
    tok = tok.strip()
    if tok in ('vcc',): return {('s','vcc_lo'),('s','vcc_hi')}
    if tok in ('vcc_lo','vcc_hi','m0','exec_lo','exec_hi'): return {('s',tok)}
    if tok == 'exec': return {('s','exec_lo'),('s','exec_hi')}
    m = _reg.match(tok)
    if not m: return set()
    c = m.group(1)
    if m.group(2) is not None: return {(c,int(m.group(2)))}
    return {(c,i) for i in range(int(m.group(3)), int(m.group(4))+1)}

TRANS = ('v_exp_f32','v_log_f32','v_rcp_f32','v_rsq_f32','v_sqrt_f32','v_sin_f32','v_cos_f32','v_rcp_iflag_f32')
def split_ops(s):
    out=[]; depth=0; cur=''
    for ch in s:
        if ch in '[(': depth+=1
        if ch in '])': depth-=1
        if ch==',' and depth==0: out.append(cur.strip()); cur=''
        else: cur+=ch
    if cur.strip(): out.append(cur.strip())
    return out

def parse(text):
    I = Ins(text)
    t = text.split(';')[0].strip()
    if not t: I.kind='nop0'; I.nws=0; return I
    if t.endswith(':'):
        I.kind='label'; I.label=t[:-1]; I.nws=0; return I
    if t.startswith('.'):
        I.kind='dir'; I.nws=0; return I
    p = t.split(None,1); op=p[0]; rest=p[1] if len(p)>1 else ''
    I.op=op
    ops = split_ops(rest)
    mods=''
    if ops:
        l = ops[-1].split(None,1)
        if len(l)>1 and not op.startswith('s_waitcnt'):
            ops[-1]=l[0]; mods=l[1]
    I.ops=ops; I.mods=mods
    R = [regs(o) for o in ops]
    U = lambda L: set().union(*L) if L else set()
    EXEC={('s','exec_lo'),('s','exec_hi')}; VCC={('s','vcc_lo'),('s','vcc_hi')}
    if op.startswith('v_mfma'):
        I.kind='mfma'; I.dst=R[0]; I.src=U(R[1:]); I.passes = 8 if '32x32x16' in op else 4
        assert '32x32x16' in op or '16x16x32' in op, op
    elif op.startswith('v_'):
        I.kind='valu'
        b = op.replace('_e32','').replace('_e64','').replace('_dpp','').replace('_sdwa','')
        if b.startswith('v_cmp'):
            I.dst=R[0]; I.src=U(R[1:])
            if b.startswith('v_cmpx'): I.dst=I.dst|EXEC
        elif b in ('v_swap_b32','v_permlane16_swap_b32','v_permlane32_swap_b32'):
            I.dst=U(R); I.src=U(R)
        elif b in ('v_add_co_u32','v_sub_co_u32','v_addc_co_u32','v_subb_co_u32','v_subrev_co_u32'):
            I.dst=R[0]|R[1]; I.src=U(R[2:])
        elif b in ('v_fmac_f32','v_dot2c_f32_bf16','v_writelane_b32'):
            I.dst=R[0]; I.src=U(R)
        elif b=='v_nop':
            pass
        else:
            I.dst=R[0]; I.src=U(R[1:])
            if '_dpp' in op and 'bound_ctrl' not in mods: I.src=I.src|R[0]
            if b=='v_cndmask_b32' and len(ops)==3: I.src|=VCC
    elif op.startswith('ds_'):
        I.kind='ds'
        if op.startswith('ds_read') or '_rtn' in op or op.startswith('ds_bpermute') or op.startswith('ds_swizzle'):
            I.dst=R[0]; I.src=U(R[1:])
        else:
            I.src=U(R)
        if 'addtid' in op: I.src|={('s','m0')}
    elif op.startswith('global_') or op.startswith('buffer_'):
        I.kind='vmem'
        if 'load_lds' in op or (op.startswith('buffer_load') and 'lds' in mods.split()):
            I.src=U(R)|{('s','m0')}
        elif '_load' in op:
            I.dst=R[0]; I.src=U(R[1:])
            if 'd16' in op: I.src|=R[0]
        elif 'atomic' in op and 'sc0' in mods.split():
            I.dst=R[0]; I.src=U(R[1:])
        else:
            I.src=U(R)
    elif op.startswith('s_'):
        if op=='s_nop': I.kind='snop'; I.nws=int(ops[0],0)+1
        elif op=='s_waitcnt': I.kind='wait'
        elif op in ('s_branch',) or op.startswith('s_cbranch'):
            I.kind='branch'; I.target=ops[0]
            if 'vcc' in op: I.src=VCC
        elif op=='s_endpgm': I.kind='end'
        elif op.startswith('s_load') or op in ('s_memtime','s_memrealtime'):
            I.kind='smem'; I.dst=R[0]; I.src=U(R[1:])
        elif op in ('s_barrier','s_sleep','s_setprio') : I.kind='salu'
        elif op.startswith('s_cmp') or op.startswith('s_bitcmp'): I.kind='salu'; I.src=U(R)
        elif 'saveexec' in op: I.kind='salu'; I.dst=R[0]|EXEC; I.src=U(R[1:])|EXEC
        else:
            I.kind='salu'; I.dst=R[0]; I.src=U(R[1:])
            if op in ('s_addk_i32','s_mulk_i32'): I.src|=R[0]
    else:
        raise ValueError('unknown instr: '+text)
    return I

def vregs(S): return {r for r in S if r[0] in 'va'}
def sregs(S): return {r for r in S if r[0]=='s'}

def need(P, C):
    n=0
    cb = C.op
    if P.kind=='valu':
        w = vregs(P.dst)
        if w:
            if C.kind=='mfma' and (w & C.src): n=max(n,2)
            if C.kind=='valu':
                if '_dpp' in cb and (w & C.src): n=max(n,2)
                if 'permlane' in cb and (w & C.src): n=max(n,2)
                if cb.startswith('v_readlane') or cb.startswith('v_readfirstlane'):
                    if w & C.src: n=max(n,1)
            if P.op.replace('_e32','').replace('_e64','') in TRANS and C.kind in ('valu','vmem','ds') and (w & C.src):
                n=max(n,1)
            if ('_sdwa' in P.op and 'dst_sel:DWORD' not in P.mods) and (w & (C.src|C.dst)): n=max(n,1)
        s = sregs(P.dst)
        if s:
            if C.kind=='valu' and (s & C.src):
                n=max(n, 4 if ('readlane' in cb or 'writelane' in cb) else 2)
            if C.kind=='vmem' and (s & C.src): n=max(n,5)
            if C.kind in ('salu','branch','smem') and (s & C.src): n=max(n,1)
            if ('s','exec_lo') in s:
                if C.kind=='mfma': n=max(n,4)
                if C.kind=='valu' and '_dpp' in cb: n=max(n,5)
                if C.kind=='valu' and ('permlane' in cb or 'readlane' in cb or 'readfirstlane' in cb): n=max(n,4)
    if P.kind=='mfma':
        D=P.dst; p8 = P.passes==8
        if C.kind=='mfma':
            A=regs(C.ops[1])|regs(C.ops[2]); Cc=regs(C.ops[3])
            if D & A: n=max(n, 12 if p8 else 8)
            if D & Cc:
                if not (Cc==D and C.passes==P.passes): n=max(n, 10 if p8 else 6)
            elif D & C.dst: n=max(n, 12 if p8 else 8)
        elif C.kind in ('valu','vmem','ds'):
            if D & (C.src|C.dst): n=max(n, 12 if p8 else 8)
        Pc = regs(P.ops[3])
        if C.kind=='valu' and (Pc & C.dst): n=max(n, 7 if p8 else 3)
    if P.kind=='salu' and ('s','m0') in P.dst and ('s','m0') in C.src and C.kind in ('vmem','ds'):
        n=max(n,1)
    if P.kind=='vmem' and ('store_dwordx4' in P.op or 'store_dwordx3' in P.op):
        data = regs(P.ops[1]) if P.op.startswith('global') else regs(P.ops[0])
        if data & C.dst: n=max(n, 2 if C.kind=='valu' else 1)
    if P.kind=='ds' and ('write_b128' in P.op or 'write_b96' in P.op):
        pass
    return n

class Asm:
    def __init__(self):
        self.L=[]
    def __call__(self, text):
        for line in text.split('\n'):
            if line.strip(): self.L.append(line.strip())
    def fix(self, verbose=False):
        I=[parse(t) for t in self.L]
        lab={x.label:i for i,x in enumerate(I) if x.kind=='label'}
        preds=[[] for _ in I]
        for i,x in enumerate(I):
            if x.kind=='branch':
                preds[lab[x.target]].append(i)
                if x.op!='s_branch' and i+1<len(I): preds[i+1].append(i)
            elif x.kind!='end' and i+1<len(I): preds[i+1].append(i)
        extra=[0]*len(I)
        changed=True
        while changed:
            changed=False
            for i,C in enumerate(I):
                if C.kind in ('label','dir','nop0','snop','wait','end'): continue
                short=0
                stack=[(p,extra[i]) for p in preds[i]]; seen={}
                while stack:
                    j,d=stack.pop()
                    if d>=13: continue
                    if j in seen and seen[j]<=d: continue
                    seen[j]=d
                    P=I[j]
                    if P.kind in ('valu','mfma','salu','vmem','ds'):
                        n=need(P,C)
                        if n>d: short=max(short,n-d)
                    for p in preds[j]: stack.append((p,d+P.nws+extra[j]))
                if short:
                    extra[i]+=short; changed=True
                    if verbose: print('nop',short,'before',C.text)
        out=[]; total=0
        for i,t in enumerate(self.L):
            if extra[i]:
                out.append(f's_nop {extra[i]-1}  ; hz'); total+=1
            out.append(t)
        self.L=out
        return total
    def check_waits(self, env=None, maxstates=20000, quiet=False):
        I=[parse(t) for t in self.L]
        lab={x.label:i for i,x in enumerate(I) if x.kind=='label'}
        errs=set(); seen=set(); stack=[(0,(),())]
        n=0
        while stack:
            i,vm,lg=stack.pop()
            while True:
                x=I[i]
                if x.kind in ('label',):
                    key=(i,vm,lg)
                    if key in seen: break
                    seen.add(key); n+=1
                    if n>maxstates: raise RuntimeError('too many states')
                if x.kind=='end': break
                touched=x.src|x.dst
                if touched:
                    for (j,d) in vm+lg:
                        if d & touched:
                            errs.add((i,j))
                if x.kind=='wait':
                    m=re.search(r'vmcnt\((\d+)\)',x.text)
                    if m:
                        k=int(m.group(1)); vm=vm[len(vm)-k:] if k<len(vm) and k>0 else (() if k==0 else vm)
                    m=re.search(r'lgkmcnt\((\d+)\)',x.text)
                    if m:
                        k=int(m.group(1))
                        if k==0: lg=()
                        elif any(I[j].kind=='smem' for j,_ in lg): pass
                        elif k<len(lg): lg=lg[len(lg)-k:]
                elif x.kind=='vmem': vm=(vm+((i,frozenset(x.dst)),))[-64:]
                elif x.kind in ('ds','smem'): lg=lg+((i,frozenset(x.dst)),)
                if x.kind=='branch':
                    t=lab[x.target]
                    if x.op=='s_branch': i=t; continue
                    known=None
                    if env and x.op in ('s_cbranch_scc0','s_cbranch_scc1'):
                        k=i-1
                        while I[k].kind in ('snop','nop0'): k-=1
                        c=I[k]
                        if c.op.startswith('s_cmp_') and c.ops[0] in env:
                            try:
                                A=env[c.ops[0]]; B=int(c.ops[1],0)
                                r={'eq':A==B,'lg':A!=B,'ge':A>=B,'gt':A>B,'lt':A<B,'le':A<=B}[c.op.split('_')[2]]
                                known = r if x.op.endswith('1') else (not r)
                            except ValueError: pass
                    if known is True: i=t; continue
                    if known is None: stack.append((t,vm,lg))
                i+=1
        seen_e=getattr(self,'_seen_e',set()); self._seen_e=seen_e
        for i,j in [e for e in sorted(errs) if e not in seen_e][:8]:
            seen_e.add((i,j))
            print(env, f'WAIT ERROR: line {i}: {I[i].text!r} touches pending result of line {j}: {I[j].text!r}', file=sys.stderr)
        return len(errs)
    def sizes(self):
        import subprocess, tempfile, os
        d=tempfile.mkdtemp()
        open(d+'/a.s','w').write('.amdgcn_target "amdgcn-amd-amdhsa--gfx950"\n.text\nk:\n'+self.text())
        r=subprocess.run(['clang','-x','assembler','-target','amdgcn-amd-amdhsa','-mcpu=gfx950','-c',d+'/a.s','-o',d+'/a.o'],capture_output=True,text=True)
        if r.returncode: print(r.stderr[:3000]); raise SystemExit(1)
        o=subprocess.run(['llvm-objdump','-d','--mcpu=gfx950',d+'/a.o'],capture_output=True,text=True).stdout
        sz=[len(l.split('//')[1].split(':')[1].split())*4 for l in o.split('\n') if '//' in l]
        I=[parse(t) for t in self.L]
        out=[]; k=0
        for x in I:
            if x.kind in ('label','dir','nop0'): out.append(0)
            else: out.append(sz[k]); k+=1
        assert k==len(sz),(k,len(sz))
        return I,out
    def align(self, minrun=6):
        I,sz=self.sizes()
        n=len(I); out=[]; off=0; lastw=None; nw=0; nn=0; cur8=0
        L=list(self.L)
        i=0
        widen_ok=lambda x: x.kind=='valu' and not any(t in x.op for t in ('_dpp','_sdwa','_e64','swap','readfirstlane','fmamk','fmaak','dot2c','accvgpr','v_nop'))
        while i<n:
            if sz[i]==8 and off%8==4:
                j=i; run=0
                while j<n and sz[j] in (0,8):
                    run+= sz[j]==8; j+=1
                if run>=minrun:
                    if lastw is not None:
                        k=lastw; p=out[k].split(None,1)
                        p[0]=p[0].replace('_e32','')+'_e64'; out[k]=' '.join(p); nw+=1
                    else:
                        out.append('s_nop 0  ; al'); nn+=1
                    off+=4; lastw=None
            out.append(L[i])
            if sz[i]==4:
                cur8=0
                if widen_ok(I[i]): lastw=len(out)-1
            elif sz[i]==8:
                cur8+=1
                if cur8>=minrun: lastw=None
            if I[i].kind=='label': lastw=None
            off+=sz[i]; i+=1
        self.L=out
        return nw,nn,off
    def text(self):
        out=[]
        for t in self.L:
            out.append(t if t.endswith(':') or t.startswith('.') else '    '+t)
        return '\n'.join(out)+'\n'
```

```python
EPOCH=0x0
F1=0x01000; F1B=0x09000; F2E=0x11000; F2L=0x19000; F3E=0x21000; F3L=0x29000; FW2=0x31000
MODF=0x39000
STG=0x41000
PROF=0x90000
MODP=0xD0000
XH=0x100000; XT=0x380000
W1P=0x600000; W2P=0x800000
X1=0xA00000; X1S=0xC80000
HB=0x1000000
DUMMY_SHIFT=0xC00000
DBG=0x2000000
NCONV=214
KSA=16528; KRB=49792; KMB=17024
def kbase(sig,w): return ((sig>>1)&1)*KRB + KSA*w + 16 + 4128*(2*(sig&1)+(sig>>2))
TTS=2720
L_KC=0
L_XH=99936
L_XT=L_XH+13728
L_TT=L_XT+12288
L_W1=L_TT+3*TTS
L_ST=L_W1+8192
L_CNT=L_ST+64
L_MOD=L_CNT+64
L_C2=L_MOD+256
L_SB=L_C2+1296
L_GB=L_SB+1296
L_END=L_GB+2592
L_XS0=0; L_XS1=40960; L_XP0=81920; L_XP1=87040; L_RED=92160
LDS_BYTES=L_END
assert L_C2%16==0 and L_SB%16==0 and L_GB%16==0 and LDS_BYTES<=163840
```

```python
from layout import *
from gen import *

NA=32

class VM:
    def __init__(s,a): s.a=a; s.q=[]
    def op(s,text,tag): s.a(text); s.q.append(tag)
    def wait(s,*tags):
        idx=max(i for i,t in enumerate(s.q) if t in tags)
        n=len(s.q)-1-idx
        assert n<=63,n
        s.a(f's_waitcnt vmcnt({n})'); s.q=s.q[idx+1:]
    def clear(s): s.q=[]

def dump_lds(g, ldsbase_sgpr, nbytes, dst_sgpr):
    a=g.a
    a(f'''s_waitcnt lgkmcnt(0)
    v_add_u32 v20, {ldsbase_sgpr}, v2
    v_add_u32 v21, {dst_sgpr}, v2''')
    for o in range(0,nbytes,1024):
        a(f'''ds_read_b128 v[24:27], v20 offset:{o}
        s_waitcnt lgkmcnt(0)
        global_store_dwordx4 v21, v[24:27], {pWS}
        v_add_u32 v21, 1024, v21
        s_nop 1''')

def gemm_ids(g):
    a=g.a
    a(f'''s_and_b32 s61, {sWG}, 7
    s_lshl_b32 s61, s61, 2
    s_lshr_b32 s6, {sWG}, 6
    s_add_u32 s61, s61, s6
    s_bfe_u32 s62, {sWG}, 0x30003
    s_lshl_b32 s63, s61, 3
    s_add_u32 s63, s63, s62
    s_lshl_b32 s6, s62, 2
    s_add_u32 s6, s6, {sW}
    s_mul_i32 s6, s6, 61440
    s_add_u32 s7, s6, {W1P+4096}
    s_add_u32 s64, s48, s7
    s_addc_u32 s65, s49, 0
    s_add_u32 s7, s6, {W2P+4096}
    s_add_u32 s66, s48, s7
    s_addc_u32 s67, s49, 0''')

def wload(vm, which, i, dst):
    a=vm.a; b=64+2*which
    L=[]
    if i and i%8==0: L.append(f's_add_u32 s{b}, s{b}, 8192\ns_addc_u32 s{b+1}, s{b+1}, 0')
    L.append((f'global_load_dwordx4 {dst}, v2, s[{b}:{b+1}] offset:{(i%8)*1024-4096} sc1', 'w%d_%d'%(which,i)))
    return L
def emit(vm, items):
    for x in items:
        if isinstance(x,tuple): vm.op(*x)
        elif callable(x): x()
        else: vm.a(x)

def mfma_stream(vm, seq, pool, look, extras, acc_first):
    a=vm.a
    order=[]; last={}
    for n,(acc,A,B) in enumerate(seq):
        for k in (A,B):
            if k not in last: order.append(k)
            last[k]=n
    slot={}; free=list(pool); issued=0; done=-1
    pos={k:i for i,k in enumerate(order)}
    started=set()
    def issue():
        nonlocal issued
        k=order[issued]; r=free.pop(0); slot[k]=r
        a(f'ds_read_b128 v[{r}:{r+3}], v{k[0]} offset:{k[1]}'); issued+=1
    for n,(acc,A,B) in enumerate(seq):
        need=max(pos[A],pos[B])
        while issued<=need: issue()
        if n==0:
            while issued<min(len(order),look+1) and free: issue()
        if need>done:
            out=issued-1-need
            a(f's_waitcnt lgkmcnt({min(out,15)})'); done=need if out<=15 else issued-16
            assert done>=need or out<=15
        c = f'v[{acc}:{acc+3}]' if acc in started else '0'
        started.add(acc)
        a(f'v_mfma_f32_16x16x32_bf16 v[{acc}:{acc+3}], v[{slot[A]}:{slot[A]+3}], v[{slot[B]}:{slot[B]+3}], {c}')
        for k in (A,B):
            if last[k]==n and slot[k] is not None:
                free.append(slot[k]); slot[k]=None
        nxt = max(pos[seq[n+1][1]],pos[seq[n+1][2]]) if n+1<len(seq) else len(order)
        c=0
        while issued<len(order) and issued<=nxt+look and free and c<2 and issued-done<=15: issue(); c+=1
        if n in extras:
            emit(vm, extras[n])

def spread(items, lo, hi, extras):
    n=len(items)
    for i,x in enumerate(items):
        extras.setdefault(lo+(hi-lo)*i//max(1,n),[]).extend(x if isinstance(x,list) else [x])

ACC=16; POOL=[32+4*i for i in range(20)]
def conv_setup(g, w3):
    a=g.a
    a(f'''v_and_b32 v20, 7, v1
    v_and_b32 v21, 1, v20
    v_lshrrev_b32 v22, 2, v20
    v_lshl_add_u32 v21, v21, 1, v22
    v_mul_u32_u24 v21, 4128, v21
    v_bfe_u32 v22, v20, 1, 1
    v_mul_u32_u24 v22, {KRB}, v22
    v_add_u32 v21, v21, v22
    v_lshrrev_b32 v22, 4, v1
    v_bfe_u32 v23, v1, 3, 1
    v_sub_u32 v23, v22, v23
    v_lshl_add_u32 v21, v23, 4, v21
    v_and_b32 v23, 15, v1
    v_lshl_add_u32 v24, v23, 1, v22
    v_mul_u32_u24 v24, 48, v24
    v_lshrrev_b32 v25, 1, v22
    v_lshl_add_u32 v26, v23, 1, v25
    v_mul_u32_u24 v26, 48, v26
    v_and_b32 v27, 1, v22
    v_lshl_add_u32 v26, v27, 3, v26
    v_lshrrev_b32 v28, 1, v23
    v_mul_u32_u24 v28, 40960, v28
    v_lshl_add_u32 v28, v25, 4, v28
    v_mul_u32_u24 v27, {X1S-X1}, v27
    v_add_u32 v28, v28, v27
    v_and_b32 v23, 1, v23
    v_lshl_add_u32 v28, v23, 5, v28''')
    def chan(dst, chs):
        a(f'''s_add_u32 s6, s51, {chs}
        s_lshl_b32 s7, s6, 6
        s_add_u32 s8, s7, {DUMMY_SHIFT}
        s_cmp_ge_u32 s6, 640
        s_cselect_b32 s7, s8, s7
        s_add_u32 s7, s7, {X1}
        s_lshl_b32 s6, s6, 3
        s_and_b32 s6, s6, 32
        v_xor_b32 v{dst}, s6, v28
        v_add_u32 v{dst}, s7, v{dst}''')
    if w3:
        a(f'''v_add_u32 v8, {32}, v21
        v_add_u32 v9, {32+KSA}, v21
        v_add_u32 v10, {32+2*KSA}, v21
        v_add_u32 v11, {L_XH}, v24
        v_add_u32 v12, {L_XH+1440}, v26''')
        for k in range(3): chan(13+k,k)
    else:
        a(f'''s_mul_i32 s6, {sW}, {KSA}
        s_add_u32 s6, s6, 32
        v_add_u32 v8, s6, v21
        s_lshl_b32 s6, {sW}, 4
        s_add_u32 s7, s6, {L_XH}
        v_add_u32 v11, s7, v24
        s_add_u32 s7, s6, {L_XH+1440}
        v_add_u32 v12, s7, v26''')
        chan(13,sW)

def conv_seq(w3, stage):
    seq=[]
    for rho in range(8):
        kA=lambda ch,m: (8+ch, 4032-64*rho-512*m)
        kB=lambda ch,d: (11, 1344-192*rho+1536*d+16*ch)
        if w3:
            c=4*stage
            for m in range(c+1):
                for ch in range(3): seq.append((ACC+4*ch,kA(ch,m),kB(ch,c-m)))
        else:
            for m in range(4*stage+4):
                for k in (2,1,0):
                    c=4*stage+1+k
                    if c>=m: seq.append((ACC+4*k,kA(0,m),kB(0,c-m)))
    return seq

def conv_epilogue(g, vm, w3, stage):
    a=g.a
    R=32
    for k in range(3):
        c = 4*stage if w3 else 4*stage+1+k
        off = 1536*c + (16*k if w3 else 0)
        a(f'ds_read_b64 v[{R+4*k}:{R+4*k+1}], v12 offset:{off}')
        a(f'ds_read_b64 v[{R+4*k+2}:{R+4*k+3}], v12 offset:{off+L_XT-L_XH-1440}')
    for k in range(3):
        c = 4*stage if w3 else 4*stage+1+k
        K=112+4*(k if w3 else 0)
        T=48+16*k; acc=ACC+4*k
        a(f's_waitcnt lgkmcnt({4-2*k})')
        for p in range(2):
            a(f'''v_lshlrev_b32 v{T+4*p}, 16, v{R+4*k+p}
            v_and_b32 v{T+4*p+1}, 0xffff0000, v{R+4*k+p}
            v_lshlrev_b32 v{T+4*p+2}, 16, v{R+4*k+2+p}
            v_and_b32 v{T+4*p+3}, 0xffff0000, v{R+4*k+2+p}''')
        for p in range(2):
            a(f'v_pk_fma_f32 v[{T+4*p}:{T+4*p+1}], v[{T+4*p}:{T+4*p+1}], v[{K}:{K+1}], v[{T+4*p+2}:{T+4*p+3}] op_sel:[0,1,0] op_sel_hi:[1,1,1]')
        for p in range(2):
            a(f'v_pk_fma_f32 v[{T+4*p}:{T+4*p+1}], v[{acc+2*p}:{acc+2*p+1}], v[{K}:{K+1}], v[{T+4*p}:{T+4*p+1}] op_sel_hi:[1,0,1]')
        for p in range(2):
            a(f'v_pk_mul_f32 v[{T+4*p+2}:{T+4*p+3}], v[{T+4*p}:{T+4*p+1}], v[{K+2}:{K+3}] op_sel_hi:[1,0]')
        O=T+8
        a(f'''v_cvt_pk_bf16_f32 v{O}, v{T}, v{T+1}
        v_cvt_pk_bf16_f32 v{O+1}, v{T+4}, v{T+5}
        v_cvt_pk_bf16_f32 v{O+2}, v{T+2}, v{T+3}
        v_cvt_pk_bf16_f32 v{O+3}, v{T+6}, v{T+7}
        s_add_u32 s6, s48, {stage*1310720+(c-4*stage)*327680}
        s_addc_u32 s7, s49, 0
        v_permlane16_swap_b32 v{O}, v{O+2}
        v_permlane16_swap_b32 v{O+1}, v{O+3}''')
        vm.op(f'global_store_dwordx4 v{13+(k if w3 else 0)}, v[{O}:{O+3}], s[6:7] sc1','st%d'%stage)

def conv_consts(g, w3):
    a=g.a
    n=3 if w3 else 1
    a(f'v_mov_b32 v22, {L_MOD}' if w3 else f's_lshl_b32 s6, {sW}, 2\ns_add_u32 s6, s6, {L_MOD}\nv_mov_b32 v22, s6')
    for k in range(n):
        a(f'ds_read2_b32 v[{112+4*k}:{113+4*k}], v22 offset0:{16+k} offset1:{48+k}')
        a(f'ds_read_b32 v{114+4*k}, v22 offset:{4*(32+k)}')

def stage_h(g):
    a=g.a
    a(f'''v_lshlrev_b32 v20, 4, v0
    v_add_u32 v20, {L_XH+1440}, v20
    v_mul_u32_u24 v21, 0x5556, v0
    v_lshrrev_b32 v21, 16, v21
    v_mul_u32_u24 v21, 3, v21
    v_sub_u32 v21, v0, v21
    v_lshlrev_b32 v21, 2, v21
    v_add_u32 v21, {L_MOD}, v21
    s_waitcnt lgkmcnt(0)
    s_barrier''')
    g.stamp(12)
    for i in range(3):
        a(f'ds_read_b128 v[{32+4*i}:{35+4*i}], v20 offset:{4096*i}')
        a(f'ds_read2_b32 v[{44+2*i}:{45+2*i}], v21 offset0:{i} offset1:{8+i}')

def stage_h2(g):
    a=g.a
    for i in range(3):
        for p in range(4):
            r=32+4*i+p; t=50+2*(p&1)
            a(f'''v_lshlrev_b32 v{t}, 16, v{r}
            v_and_b32 v{t+1}, 0xffff0000, v{r}
            v_pk_fma_f32 v[{t}:{t+1}], v[{t}:{t+1}], v[{44+2*i}:{45+2*i}], v[{44+2*i}:{45+2*i}] op_sel:[0,1,0] op_sel_hi:[1,1,0]
            v_cvt_pk_bf16_f32 v{r}, v{t}, v{t+1}''')
    for i in range(3): a(f'ds_write_b128 v20, v[{32+4*i}:{35+4*i}] offset:{4096*i}')

def modf_issue(g, vm, R):
    a=g.a
    a(f'v_add_u32 v{R+56}, {MODF+4096}, v2\nv_add_u32 v{R+57}, {MODF+12288}, v2\nv_min_u32 v{R+58}, {855*16-13*1024}, v2\nv_add_u32 v{R+58}, {MODF+13*1024}, v{R+58}')
    for i in range(14):
        if i<8: t=f'v{R+56}, {pWS} offset:{1024*(i-4)}'
        elif i<13: t=f'v{R+57}, {pWS} offset:{1024*(i-12)}'
        else: t=f'v{R+58}, {pWS}'
        vm.op(f'global_load_dwordx4 v[{R+4*i}:{R+4*i+3}], {t} sc1','modf')
def modf_use(g, vm, R):
    a=g.a; L=g.lab('mf'); D=g.lab('mfd')
    vm.wait('modf'); keep=list(vm.q)
    a(f's_mov_b32 s90, 0\n{L}:')
    a(f'v_cmp_ne_u32 vcc, {sTAG}, v{R+2}')
    for i in range(1,14): a(f'v_cmp_ne_u32 s[88:89], {sTAG}, v{R+4*i+2}\ns_nop 0\ns_or_b64 vcc, vcc, s[88:89]')
    a(f's_nop 0\ns_cbranch_vccz {D}\ns_add_u32 s90, s90, 1\ns_cmp_gt_u32 s90, {POLL_MAX}\ns_cbranch_scc1 {D}\ns_sleep 2')
    v2=VM(a); modf_issue(g,v2,R); a(f's_waitcnt vmcnt(0)\ns_branch {L}\n{D}:')
    a(f'''v_lshrrev_b32 v{R+56}, 2, v1
    v_mul_u32_u24 v{R+56}, 3, v{R+56}
    v_and_b32 v{R+57}, 3, v1
    v_add_u32 v{R+56}, v{R+56}, v{R+57}
    v_cmp_eq_u32 vcc, 3, v{R+57}
    v_mov_b32 v{R+58}, 644''')
    for i in range(14):
        a(f'''v_add_u32 v{R+57}, {48*i}, v{R+56}
        v_min_u32 v{R+57}, 644, v{R+57}
        v_cndmask_b32 v{R+57}, v{R+57}, v{R+58}, vcc
        v_lshlrev_b32 v{R+4*i+2}, 1, v{R+57}
        v_lshlrev_b32 v{R+4*i+3}, 2, v{R+57}
        v_add_u32 v{R+4*i+2}, {L_C2}, v{R+4*i+2}
        v_add_u32 v{R+4*i+3}, {L_GB}, v{R+4*i+3}''')
    for i in range(14):
        a(f'''ds_write_b16 v{R+4*i+2}, v{R+4*i}
        ds_write_b16_d16_hi v{R+4*i+2}, v{R+4*i} offset:{L_SB-L_C2}
        ds_write_b32 v{R+4*i+3}, v{R+4*i+1}''')
    a('s_waitcnt lgkmcnt(0)')
    vm.q=keep

def flag_addrs(g, base, n, R):
    a=g.a
    for i in range(4):
        a(f'v_add_u32 v{R+i}, {64*i}, v1\nv_min_u32 v{R+i}, {n-1}, v{R+i}\nv_lshlrev_b32 v{R+i}, 7, v{R+i}\nv_add_u32 v{R+i}, {base}, v{R+i}')
    return [(f'v{R+i}',0) for i in range(4)]

def w3_preconv(g):
    a=g.a
    for k in range(3):
        a(f'''v_add_u32 v20, {64*k}, v1
        v_mul_u32_u24 v21, 0x5556, v20
        v_lshrrev_b32 v21, 16, v21
        v_mul_u32_u24 v22, 3, v21
        v_sub_u32 v22, v20, v22
        v_add_u32 v22, s51, v22
        v_min_u32 v22, 639, v22
        v_lshrrev_b32 v23, 2, v22
        v_lshlrev_b32 v23, 14, v23
        v_lshl_add_u32 v23, v21, 6, v23
        v_and_b32 v22, 3, v22
        v_lshl_add_u32 v{24+k}, v22, 4, v23''')
    a(f'''v_bfe_u32 v20, v1, 2, 3
    v_mul_u32_u24 v21, 0x5556, v20
    v_lshrrev_b32 v21, 16, v21
    v_mul_u32_u24 v21, 3, v21
    v_sub_u32 v21, v20, v21
    v_add_u32 v21, s51, v21
    v_min_u32 v21, 639, v21
    v_lshlrev_b32 v30, 1, v21''')
    a(f'global_load_ushort v31, v30, {pD}')
    a(f'''v_lshrrev_b32 v22, 5, v1
    v_mul_u32_u24 v22, 640, v22
    v_add_u32 v21, v21, v22
    v_and_b32 v22, 3, v1
    v_mul_u32_u24 v22, 3840, v22
    v_add_u32 v21, v21, v22
    v_lshlrev_b32 v27, 3, v21
    v_add_u32 v27, {MODP}, v27
    v_add_u32 v28, {1280*8}, v27
    v_add_u32 v29, {2560*8}, v27''')
    fa=flag_addrs(g,F1,256,32)
    g.poll(fa,40)
    g.stamp(6)
    def dma(src,dst):
        a(f's_add_u32 s6, s48, {src}\ns_addc_u32 s7, s49, 0')
        for i in range(12):
            if i and i%3==0: a('s_add_u32 s6, s6, 4096\ns_addc_u32 s7, s7, 0')
            a(f's_mov_b32 m0, {dst+1024*i}')
            a(f'global_load_lds_dwordx4 v{24+i%3}, s[6:7] sc1')
    dma(XH,L_XH+1440)
    g.poll([('v27',0),('v28',0),('v29',0)],40,width=2,tagoff=1)
    g.stamp(7)
    for k in range(3):
        a(f'v_add_f32_dpp v{40+2*k}, v{40+2*k}, v{40+2*k} quad_perm:[1,0,3,2] row_mask:0xf bank_mask:0xf')
    for k in range(3):
        a(f'v_add_f32_dpp v{40+2*k}, v{40+2*k}, v{40+2*k} quad_perm:[2,3,0,1] row_mask:0xf bank_mask:0xf')
    for k in range(3):
        a(f'v_cvt_pk_bf16_f32 v{40+2*k}, v{40+2*k}, v{40+2*k}\nv_lshlrev_b32 v{40+2*k}, 16, v{40+2*k}')
    a(f'''v_cmp_lt_u32 vcc, 31, v1
    v_add_f32 v41, 1.0, v40
    v_add_f32 v45, 1.0, v44
    v_cvt_pk_bf16_f32 v41, v41, v45
    v_lshlrev_b32 v43, 16, v41
    v_and_b32 v45, 0xffff0000, v41
    v_cndmask_b32 v40, v40, v43, vcc
    v_cndmask_b32 v44, v45, v44, vcc
    v_lshrrev_b32 v20, 2, v1
    v_lshlrev_b32 v20, 2, v20
    v_add_u32 v20, {L_MOD}, v20
    v_lshlrev_b32 v31, 16, v31
    v_mul_f32 v31, v31, v42
    ds_write_b32 v20, v40
    ds_write_b32 v20, v42 offset:64
    ds_write_b32 v20, v44 offset:128
    s_mov_b32 exec_hi, 0
    ds_write_b32 v20, v31 offset:192
    s_mov_b64 exec, -1
    v_and_b32 v20, 3, v1
    v_lshlrev_b32 v21, 2, v20
    v_add_u32 v21, {L_MOD}, v21
    s_waitcnt lgkmcnt(0)
    ds_read_b32 v40, v21 offset:{4*32}
    ds_read_b32 v43, v21 offset:{4*24}
    ds_read_b32 v41, v21 offset:{4*40}
    s_lshl_b32 s6, {sWG}, 6
    s_add_u32 s6, s6, {MODF}
    v_lshl_add_u32 v20, v20, 4, s6
    v_mov_b32 v42, {sTAG}
    s_waitcnt lgkmcnt(0)
    v_lshrrev_b32 v40, 16, v40
    v_or_b32 v40, v40, v43
    s_mov_b64 exec, 15
    global_store_dwordx4 v20, v[40:43], {pWS} sc1
    s_mov_b64 exec, -1''')
    fa=flag_addrs(g,F1B,256,32)
    g.poll(fa,44)
    g.stamp(8)
    dma(XT,L_XT)
    a('s_waitcnt vmcnt(0)')

def conv_wave(g, w3):
    a=g.a; vm=VM(a)
    gemm_ids(g)
    conv_setup(g,w3)
    if w3: w3_preconv(g)
    stage_h(g)
    conv_consts(g,w3)
    a('s_waitcnt lgkmcnt(0)')
    stage_h2(g)
    a('s_waitcnt lgkmcnt(0)\ns_barrier')
    g.stamp(13)
    wl=[wload(vm,0,i,f'a[{4*i}:{4*i+3}]') for i in range(60)]
    ne=g.o.get('w1_early',24)
    seq=conv_seq(w3,0); ex={}
    spread(wl[:ne],0,len(seq),ex)
    mfma_stream(vm,seq,POOL,g.o.get('look',9),ex,None)
    g.stamp(14)
    conv_epilogue(g,vm,w3,0)
    if w3: modf_issue(g,vm,128)
    g.stamp(15)
    seq=conv_seq(w3,1); ex={}
    n=len(seq); sig=n*g.o.get('f2e_at',4)//8
    spread(wl[ne:],0,n*5//8,ex)
    def signal():
        vm.wait('st0'); a('s_barrier')
        if w3: g.flag_store(F2E,sWG,124); vm.q.append('flag')
    ex.setdefault(sig,[]).append(signal)
    mfma_stream(vm,seq,POOL,g.o.get('look',9),ex,None)
    g.stamp(16)
    if w3:
        modf_use(g,vm,128)
        w3_polls2(g); vm.clear()
    conv_epilogue(g,vm,w3,1)

def w3_polls2(g):
    a=g.a
    fa=flag_addrs(g,F2E,NCONV,128)
    a(f'v_min_u32 v132, {255-NCONV}, v1\nv_lshlrev_b32 v132, 7, v132\nv_add_u32 v132, {FW2+128*NCONV}, v132')
    g.poll(fa+[('v132',0)],136)

def side_rest(g, w3):
    a=g.a; vm=VM(a)
    gemm_ids(g)
    if w3:
        fa=flag_addrs(g,F1B,256,32); g.poll(fa,40)
    a('s_barrier')
    for i in range(60): emit(vm, wload(vm,0,i,f'a[{4*i}:{4*i+3}]'))
    if w3:
        a('s_waitcnt vmcnt(40)'); vm.q=vm.q[-40:]
        modf_issue(g,vm,128); modf_use(g,vm,128); w3_polls2(g)
    else: a('s_waitcnt vmcnt(0)')

def rest(g):
    a=g.a
    if g.stop=='p1':
        a(f'''s_add_u32 s6, s51, {sW}
        s_mul_i32 s6, s6, 34816
        s_add_u32 s6, s6, {DBG}''')
        dump_lds(g,'s59',17408,'s6')
        a(f's_add_u32 s59, s59, {KRB}\ns_add_u32 s6, s6, 17408')
        dump_lds(g,'s59',17408,'s6')
        a('s_branch L_FIN')
        g.w3_p1(); a('s_branch L_FIN')
        g.side_w2(); a('s_branch L_FIN')
        return
    conv_wave(g,False); a('s_branch L_POST')
    g.w3_p1()
    a(f's_cmp_ge_u32 {sWG}, {NCONV}\ns_cbranch_scc1 L_SIDE3')
    conv_wave(g,True); a('s_branch L_POST')
    a('L_SIDE3:'); side_rest(g,True); a('s_branch L_POST')
    g.side_w2(); side_rest(g,False)
    a('L_POST:')
    g.stamp(17)
    if g.stop=='conv':
        a('s_waitcnt vmcnt(0)')
        epoch_update(g); return
    from phases3 import gemms
    gemms(g)

def epoch_update(g):
    a=g.a; L=g.lab('ep')
    a(f'''s_or_b32 s6, {sWG}, {sW}
    s_cmp_lg_u32 s6, 0
    s_cbranch_scc1 {L}
    v_mov_b32 v20, {EPOCH}
    v_mov_b32 v21, {sTAG}
    s_mov_b64 exec, 1
    global_store_dword v20, v21, {pWS} sc1
    s_mov_b64 exec, -1
    {L}:''')
```

```python
from layout import *
from gen import *
from phases2 import VM, wload, emit, spread, epoch_update, NA

U1=16; V1=28; ACC=40; XO=64; SG=96; PF=112; ST=116
NB=60-NA
def w2reg(i): return f'v[{128+4*i}:{131+4*i}]' if i<NA else f'a[{4*(i-NA)}:{4*(i-NA)+3}]'

def x_dma(g, vm, stage):
    a=g.a
    a(f'''s_mul_i32 s10, s61, 40960
    s_add_u32 s10, s10, {stage*1310720}
    s_mul_i32 s11, s62, 5120
    s_add_u32 s11, s11, s10
    s_add_u32 s11, s11, {X1}
    s_add_u32 s8, s48, s11
    s_addc_u32 s9, s49, 0
    s_add_u32 s10, s10, {X1S}
    s_add_u32 s6, s48, s10
    s_addc_u32 s7, s49, 0
    s_lshl_b32 s10, {sW}, 10
    s_add_u32 m0, s10, {L_XP0 if stage==0 else L_XP1}''')
    vm.op('global_load_lds_dwordx4 v3, s[8:9] sc1','xp')
    a(f's_mov_b32 m0, {(L_XP0 if stage==0 else L_XP1)+4096-2048}\nv_add_u32 v4, 2048, v2')
    vm.op('global_load_lds_dwordx4 v4, s[8:9] offset:2048 sc1','xp')
    for r in range(10):
        if r: a('s_add_u32 s6, s6, 4096\ns_addc_u32 s7, s7, 0')
        a(f's_add_u32 m0, s10, {(L_XS0 if stage==0 else L_XS1)+4096*r}')
        vm.op('global_load_lds_dwordx4 v3, s[6:7] sc1',f'xr{r}')

def stats_publish(g, vm, stage):
    a=g.a
    for T in range(5): a(f'ds_read_b64_tr_b16 v[{XO+16+2*T}:{XO+17+2*T}], v10 offset:{1024*T+(0 if stage==0 else L_XP1-L_XP0)}')
    a(f'''v_mov_b32 v{ST}, 0
    v_mov_b32 v{ST+1}, 0
    v_mov_b32 v{ST+2}, 0x3f803f80
    s_lshl_b32 s6, s63, 9
    s_add_u32 s6, s6, {STG+stage*131072}
    s_and_b32 s7, {sW}, 1
    s_lshl_b32 s7, s7, 8
    s_add_u32 s6, s6, s7
    v_add_u32 v4, s6, v2''')
    return
def stats_publish2(g, vm, stage, nyoung):
    a=g.a
    a(f's_waitcnt lgkmcnt({nyoung})')
    for i in range(10):
        a(f'v_dot2c_f32_bf16 v{ST}, v{XO+16+i}, v{ST+2}')
        a(f'v_dot2c_f32_bf16 v{ST+1}, v{XO+16+i}, v{XO+16+i}')
    a(f'''s_nop 2
    v_permlane16_swap_b32 v{ST}, v{ST+1}
    v_add_f32 v{ST}, v{ST}, v{ST+1}
    v_mov_b32 v{ST+1}, v{ST}
    v_mov_b32 v{ST+2}, {sTAG}
    v_mov_b32 v{ST+3}, {sTAG}
    v_permlane32_swap_b32 v{ST}, v{ST+1}
    v_add_f32 v{ST}, v{ST}, v{ST+1}
    v_mov_b32 v{ST+1}, v{ST}
    v_permlane16_swap_b32 v{ST}, v{ST+1}
    s_mov_b64 exec, 0xffff''')
    vm.op(f'global_store_dwordx4 v4, v[{ST}:{ST+3}], {pWS} sc1','stp')
    a('s_mov_b64 exec, -1')

def stats_gather_items(stage):
    return [(f'global_load_dwordx4 v[{SG+8*L+4*p}:{SG+8*L+4*p+3}], v11, {pWS} offset:{512*p+256*L} sc1','sg') for L in range(2) for p in range(2)]
def stats_use(g, vm, stage):
    a=g.a; L=g.lab('sg'); D=g.lab('sgd')
    vm.wait('sg'); keep=list(vm.q)
    a(f's_mov_b32 s90, 0\n{L}:\nv_cmp_ne_u32 vcc, {sTAG}, v{SG+2}')
    for i in range(1,4): a(f'v_cmp_ne_u32 s[88:89], {sTAG}, v{SG+4*i+2}\ns_nop 0\ns_or_b64 vcc, vcc, s[88:89]')
    a(f's_nop 0\ns_cbranch_vccz {D}\ns_add_u32 s90, s90, 1\ns_cmp_gt_u32 s90, {POLL_MAX}\ns_cbranch_scc1 {D}')
    for t,_ in stats_gather_items(stage): a(t)
    a(f's_waitcnt vmcnt(0)\ns_branch {L}\n{D}:')
    vm.q=keep
    s0,q0,s1,q1=SG,SG+1,SG+8,SG+9
    a(f'''v_pk_add_f32 v[{s0}:{q0}], v[{s0}:{q0}], v[{SG+4}:{SG+5}]
    v_pk_add_f32 v[{s1}:{q1}], v[{s1}:{q1}], v[{SG+12}:{SG+13}]
    v_permlane16_swap_b32 v{s0}, v{q0}
    v_permlane16_swap_b32 v{s1}, v{q1}
    v_add_f32 v{s0}, v{s0}, v{q0}
    v_add_f32 v{s1}, v{s1}, v{q1}
    v_permlane32_swap_b32 v{s0}, v{s1}
    v_add_f32 v{s0}, v{s0}, v{s1}
    v_mov_b32 v{q0}, v{s0}
    v_permlane16_swap_b32 v{s0}, v{q0}
    v_mul_f32 v{s0}, 0x3acccccd, v{s0}
    v_mul_f32 v{q0}, 0x3acccccd, v{q0}
    v_fma_f32 v{q0}, -v{s0}, v{s0}, v{q0}
    v_max_f32 v{q0}, 0, v{q0}
    v_cvt_pk_bf16_f32 v{s1}, -v{s0}, v{q0}
    v_and_b32 v{q0}, 0xffff0000, v{s1}
    v_lshlrev_b32 v{ST}, 16, v{s1}
    v_add_f32 v{q0}, 0x3727c5ac, v{q0}
    v_cvt_pk_bf16_f32 v{q0}, v{q0}, v{q0}
    v_lshlrev_b32 v{q0}, 16, v{q0}
    v_sqrt_f32 v{q0}, v{q0}
    v_mov_b32 v{ST+2}, v{ST}
    v_cvt_pk_bf16_f32 v{q0}, v{q0}, v{q0}
    v_lshlrev_b32 v{q0}, 16, v{q0}
    v_rcp_f32 v{ST+1}, v{q0}
    v_permlane32_swap_b32 v{ST}, v{ST+2}
    v_mov_b32 v{ST+3}, v{ST+1}
    v_permlane32_swap_b32 v{ST+1}, v{ST+3}''')

def check_flag(g, vm, tag, reg, addr):
    a=g.a; L=g.lab('cf'); D=g.lab('cfd')
    vm.wait(tag); keep=list(vm.q)
    a(f'''s_mov_b32 s90, 0
    {L}:
    v_cmp_ne_u32 vcc, {sTAG}, v{reg}
    s_nop 0
    s_cbranch_vccz {D}
    s_add_u32 s90, s90, 1
    s_cmp_gt_u32 s90, {POLL_MAX}
    s_cbranch_scc1 {D}
    s_sleep 2
    global_load_dword v{reg}, v{addr}, {pWS} sc1
    s_waitcnt vmcnt(0)
    s_branch {L}
    {D}:''')
    vm.q=keep

def flag_by_w3(g, base, idx, vt):
    a=g.a; L=g.lab('fw')
    a(f's_cmp_lg_u32 {sW}, 3\ns_cbranch_scc1 {L}')
    g.flag_store(base,idx,vt); a(f'{L}:')

def g1_loop(g, vm, stage, extras, bars, pre):
    a=g.a
    LA=2
    def reads(s):
        if s in bars:
            vm.wait(*bars[s]); a('s_barrier')
        b=XO+8*(s%4) if s%4!=2 and s%4!=3 else XO+8*(s%4)
        for L in range(2):
            for h in range(2):
                a(f'ds_read_b64_tr_b16 v[{b+4*L+2*h}:{b+4*L+2*h+1}], v{8+L} offset:{2048*s+1024*h}')
    reads(0); reads(1)
    pre(8)
    for s in range(20):
        b=XO+8*(s%4)
        a(f's_waitcnt lgkmcnt({4 if s<19 else 0})')
        n=0
        for T in range(3):
            for L in range(2):
                c=ACC+8*T+4*L
                a(f'v_mfma_f32_16x16x32_bf16 v[{c}:{c+3}], a[{12*s+4*T}:{12*s+4*T+3}], v[{b+4*L}:{b+4*L+3}], {"0" if s==0 else f"v[{c}:{c+3}]"}')
                if n==0 and s+LA<20: reads(s+LA)
                if 6*s+n in extras: emit(vm, extras[6*s+n])
                n+=1

def g1_epilogue(g, vm, stage):
    a=g.a
    a(f'''s_mul_i32 s10, s61, 96
    s_mul_i32 s11, s62, 12
    s_add_u32 s10, s10, s11
    s_mul_i32 s11, {sW}, 3
    s_add_u32 s10, s10, s11
    s_lshl_b32 s10, s10, 10
    s_add_u32 s10, s10, {HB+stage*32*96*1024}
    s_add_u32 s6, s48, s10
    s_addc_u32 s7, s49, 0
    s_mov_b32 s8, 0xbfb8aa3b''')
    for T in range(3):
        P=[(ACC+8*T+4*L+2*p, U1+4*T+2*p, V1+4*T+2*p, ST+2*L, XO+8*(T&1)+4*L+2*p) for L in range(2) for p in range(2)]
        for c,u,v,m,t in P: a(f'v_pk_fma_f32 v[{c}:{c+1}], v[{u}:{u+1}], v[{m}:{m+1}], v[{c}:{c+1}] op_sel_hi:[1,0,1]')
        for c,u,v,m,t in P: a(f'v_pk_fma_f32 v[{c}:{c+1}], v[{c}:{c+1}], v[{m}:{m+1}], v[{v}:{v+1}] op_sel:[0,1,0] op_sel_hi:[1,1,1]')
        for c,u,v,m,t in P: a(f'v_pk_mul_f32 v[{t}:{t+1}], v[{c}:{c+1}], s[8:9] op_sel_hi:[1,0]')
        for c,u,v,m,t in P: a(f'v_exp_f32 v{t}, v{t}\nv_exp_f32 v{t+1}, v{t+1}')
        for c,u,v,m,t in P: a(f'v_pk_add_f32 v[{t}:{t+1}], v[{t}:{t+1}], 1.0 op_sel_hi:[1,0]')
        for c,u,v,m,t in P: a(f'v_rcp_f32 v{t}, v{t}\nv_rcp_f32 v{t+1}, v{t+1}')
        for c,u,v,m,t in P: a(f'v_pk_mul_f32 v[{t}:{t+1}], v[{t}:{t+1}], v[{c}:{c+1}]')
        O=XO+16+4*T
        for i,(c,u,v,m,t) in enumerate(P): a(f'v_cvt_pk_bf16_f32 v{O+i}, v{t}, v{t+1}')
        vm.op(f'global_store_dwordx4 v2, v[{O}:{O+3}], s[6:7] offset:{1024*T} sc1',f'H{stage}')

HBUF=32; A2=4*NB
def h_loads(g, stage):
    out=[]
    for s in range(12):
        L=[]
        if s==0:
            L.append(f'''s_mul_i32 s10, s61, 96
            s_mul_i32 s11, {sW}, 24
            s_add_u32 s10, s10, s11
            s_lshl_b32 s10, s10, 10
            s_add_u32 s10, s10, {HB+stage*32*96*1024+4096}
            s_add_u32 s68, s48, s10
            s_addc_u32 s69, s49, 0''')
        elif s%4==0: L.append('s_add_u32 s68, s68, 8192\ns_addc_u32 s69, s69, 0')
        for k in range(2):
            r=HBUF+8*s+4*k
            L.append((f'global_load_dwordx4 v[{r}:{r+3}], v2, s[68:69] offset:{((2*s+k)%8)*1024-4096} sc1',f'h{stage}_{s}'))
        out.append(L)
    return out

def g2_loop(g, vm, stage, extras):
    a=g.a
    def prep(s):
        b=HBUF+8*s
        tags=[f'h{stage}_{s}']
        if stage==0: tags+= [f'w1_{i}' for i in range(5*s,5*s+5)]
        if any(t in vm.q for t in tags): vm.wait(*tags)
        a(f'v_swap_b32 v{b+2}, v{b+4}\nv_swap_b32 v{b+3}, v{b+5}')
    prep(0)
    for s in range(12):
        b=HBUF+8*s; n=0
        for T in range(5):
            for L in range(2):
                c=A2+8*T+4*L
                a(f'v_mfma_f32_16x16x32_bf16 a[{c}:{c+3}], {w2reg(5*s+T)}, v[{b+4*L}:{b+4*L+3}], {"0" if s==0 else f"a[{c}:{c+3}]"}')
                if n==6 and s<11: prep(s+1)
                if 10*s+n in extras: emit(vm, extras[10*s+n])
                n+=1

def g2_epilogue(g, vm, stage, R):
    a=g.a
    RED = L_RED if stage==0 else L_XS0
    XP = L_XP0 if stage==0 else L_XP1
    for k in range(1,4):
        a(f's_add_u32 s6, {sW}, {k}\ns_and_b32 s6, s6, 3\ns_mul_i32 s6, s6, 6144\ns_add_u32 s6, s6, {RED}\nv_add_u32 v{R+k}, s6, v2')
    a(f'''s_lshl_b32 s6, {sW}, 10
    s_add_u32 s7, s6, {RED+24576}
    v_add_u32 v{R}, s7, v2
    s_add_u32 s7, s6, {XP}
    v_add_u32 v{R+4}, s7, v12
    v_xor_b32 v{R+5}, 32, v{R+4}
    s_mul_i32 s6, s62, 320
    s_add_u32 s6, s6, {L_GB}
    v_lshrrev_b32 v{R+6}, 4, v1
    v_lshl_add_u32 v{R+6}, v{R+6}, 4, s6
    s_lshl_b32 s6, {sW}, 6
    v_add_u32 v{R+7}, s6, v{R+6}''')
    X=R+8
    a(f'''ds_read_b64_tr_b16 v[{X}:{X+1}], v{R+4}
    ds_read_b64_tr_b16 v[{X+2}:{X+3}], v{R+5}
    ds_read_b64_tr_b16 v[{X+4}:{X+5}], v10 offset:{4096+XP-L_XP0}
    ds_read_b128 v[{X+8}:{X+11}], v{R+7}
    ds_read_b128 v[{X+12}:{X+15}], v{R+6} offset:256''')
    for k in range(1,4):
        for L in range(2):
            c=A2+8*k+4*L
            a(f'ds_write_b128 v{R+k}, a[{c}:{c+3}] offset:{3072*L+1024*(3-k)}')
    for L in range(2):
        c=A2+32+4*L
        a(f'ds_write_b128 v{R}, a[{c}:{c+3}] offset:{4096*L}')
    a(f'''s_mul_i32 s6, {sW}, 6144
    s_add_u32 s6, s6, {RED}
    v_add_u32 v{R+1}, s6, v2
    s_and_b32 s6, {sW}, 1
    s_lshl_b32 s6, s6, 12
    s_add_u32 s6, s6, {RED+24576}
    v_add_u32 v{R+2}, s6, v2''')
    Y=X+16
    for i in range(8): a(f'v_accvgpr_read_b32 v{Y+i}, a{A2+i}')
    a('s_waitcnt lgkmcnt(0)\ns_barrier')
    return X,Y

def g2_final(g, vm, stage, R, X, Y, P):
    a=g.a
    for L in range(2):
        for k in range(3): a(f'ds_read_b128 v[{P+12*L+4*k}:{P+12*L+4*k+3}], v{R+1} offset:{3072*L+1024*k}')
    for k in range(4): a(f'ds_read_b128 v[{P+24+4*k}:{P+27+4*k}], v{R+2} offset:{1024*k}')
    a(f'''s_mul_i32 s6, s61, {32*1280}
    s_mul_i32 s7, s62, 160
    s_add_u32 s6, s6, s7
    s_add_u32 s6, s6, {stage*1024*1280}
    v_and_b32 v{R+3}, 15, v1
    v_mul_u32_u24 v{R+3}, 1280, v{R+3}
    v_add_u32 v{R+3}, s6, v{R+3}
    v_bfe_u32 v{R+4}, v1, 4, 1
    v_mul_u32_u24 v{R+4}, {16*1280}, v{R+4}
    v_lshrrev_b32 v{R+5}, 5, v1
    v_lshl_add_u32 v{R+4}, v{R+5}, 4, v{R+4}
    s_lshl_b32 s7, {sW}, 5
    v_add3_u32 v{R+4}, v{R+4}, s7, v{R+3}
    v_lshrrev_b32 v{R+5}, 4, v1
    s_and_b32 s7, {sW}, 1
    s_mul_i32 s7, s7, {16*1280}
    s_add_u32 s7, s7, 128
    v_lshl_add_u32 v{R+5}, v{R+5}, 3, s7
    v_add_u32 v{R+5}, v{R+5}, v{R+3}''')
    def fin(acc, parts, x, gb, out):
        for p in parts:
            for h in range(2): a(f'v_pk_add_f32 v[{acc+2*h}:{acc+2*h+1}], v[{acc+2*h}:{acc+2*h+1}], v[{p+2*h}:{p+2*h+1}]')
        t=parts[0]
        for h in range(2): a(f'v_lshlrev_b32 v{t+2*h}, 16, v{x+h}\nv_and_b32 v{t+2*h+1}, 0xffff0000, v{x+h}')
        for h in range(2): a(f'v_pk_fma_f32 v[{acc+2*h}:{acc+2*h+1}], v[{acc+2*h}:{acc+2*h+1}], v[{gb+2*h}:{gb+2*h+1}], v[{t+2*h}:{t+2*h+1}]')
        for h in range(2): a(f'v_cvt_pk_bf16_f32 v{out+h}, v{acc+2*h}, v{acc+2*h+1}')
    O=Y+8
    a('s_waitcnt lgkmcnt(7)')
    fin(Y,[P,P+4,P+8],X,X+8,O)
    a('s_waitcnt lgkmcnt(4)')
    fin(Y+4,[P+12,P+16,P+20],X+2,X+8,O+2)
    a(f'v_permlane16_swap_b32 v{O}, v{O+2}\nv_permlane16_swap_b32 v{O+1}, v{O+3}')
    vm.op(f'global_store_dwordx4 v{R+4}, v[{O}:{O+3}], {pOut}','out')
    a('s_waitcnt lgkmcnt(0)')
    fin(P+24,[P+28,P+32,P+36],X+4,X+12,O+4)
    vm.op(f'global_store_dwordx2 v{R+5}, v[{O+4}:{O+5}], {pOut}','out')

def gemms(g):
    a=g.a; o=g.o; vm=VM(a)
    vm.q=['w1','st1','st1','st1']
    a(f'''v_lshlrev_b32 v3, 4, v0
    v_lshrrev_b32 v12, 2, v1
    v_lshlrev_b32 v12, 6, v12
    v_bfe_u32 v4, v1, 4, 1
    v_lshl_add_u32 v12, v4, 5, v12
    v_and_b32 v4, 3, v1
    v_lshl_add_u32 v12, v4, 3, v12
    v_add_u32 v8, {L_XS0}, v12
    v_xor_b32 v9, 32, v8
    s_and_b32 s6, {sW}, 1
    s_lshl_b32 s6, s6, 5
    v_xor_b32 v10, s6, v12
    v_add_u32 v10, {L_XP0}, v10
    v_lshrrev_b32 v4, 4, v1
    v_lshlrev_b32 v11, 10, v4
    v_and_b32 v5, 15, v1
    v_lshl_add_u32 v11, v5, 4, v11
    s_lshl_b32 s6, s61, 12
    s_add_u32 s6, s6, {STG}
    v_add_u32 v11, s6, v11
    v_bfe_u32 v5, v1, 3, 1
    v_mul_u32_u24 v5, {L_SB-L_C2}, v5
    v_lshl_add_u32 v5, v4, 3, v5
    v_add_u32 v5, {L_C2}, v5
    v_min_u32 v13, {NCONV-1}, v0
    v_lshlrev_b32 v13, 7, v13
    v_add_u32 v13, {F2L}, v13
    v_and_b32 v14, 1, v1
    s_lshl_b32 s6, s61, 3
    s_lshl_b32 s7, {sW}, 1
    s_add_u32 s6, s6, s7
    v_add_u32 v14, s6, v14
    v_lshlrev_b32 v14, 7, v14
    v_add_u32 v15, {F3L}, v14
    v_add_u32 v14, {F3E}, v14
    s_barrier''')
    g.stamp(18)
    x_dma(g,vm,0)
    w2=[wload(vm,1,i,w2reg(i)) for i in range(60)]
    def uvr(s):
        b=XO+4*(s%6)
        a(f'ds_read_b64 v[{b}:{b+1}], v5 offset:{64*s}\nds_read_b64 v[{b+2}:{b+3}], v5 offset:{64*s+32}')
    for s in range(4): uvr(s)
    vm.wait('w1')
    ex={}; spread(w2[:NA],0,60,ex)
    for s in range(20):
        b=XO+4*(s%6)
        a(f's_waitcnt lgkmcnt({min(6,2*(19-s))})')
        for T in range(3):
            c=ACC+4*T
            a(f'v_mfma_f32_16x16x32_bf16 v[{c}:{c+3}], a[{12*s+4*T}:{12*s+4*T+3}], v[{b}:{b+3}], {"0" if s==0 else f"v[{c}:{c+3}]"}')
            if T==0 and s+4<20: uvr(s+4)
            if 3*s+T in ex: emit(vm,ex[3*s+T])
    vm.wait('xr9'); a('s_barrier')
    flag_by_w3(g,F2L,sWG,PF)
    g.stamp(19)
    for i in range(12):
        a(f'v_mov_b32 v{U1+i}, v{ACC+i}\nv_mov_b32 v{V1+i}, v{ACC+i}')
    for i in range(12):
        a(f'v_mov_b32_dpp v{U1+i}, v{ACC+i} row_shr:8 row_mask:0xf bank_mask:0xf\nv_mov_b32_dpp v{V1+i}, v{ACC+i} row_shl:8 row_mask:0xf bank_mask:0xf')
    stats_publish(g,vm,0)
    ex={}
    k=6*o.get('sg_at',15)
    ex[k]=stats_gather_items(0)+[(f'global_load_dword v{PF}, v13, {pWS} sc1','f2l')]
    g1_loop(g,vm,0,ex,{},lambda n: stats_publish2(g,vm,0,n))
    g.stamp(20)
    check_flag(g,vm,'f2l',PF,13)
    a('s_barrier')
    x_dma(g,vm,1)
    a(f'v_add_u32 v8, {L_XS1-L_XS0}, v8\nv_add_u32 v9, {L_XS1-L_XS0}, v9')
    vm.q=['sg']+vm.q
    stats_use(g,vm,0)
    a('v_add_u32 v11, 131072, v11')
    g1_epilogue(g,vm,0)
    g.stamp(21)
    vm.wait('xr1'); a('s_barrier')
    g.stamp(22)
    stats_publish(g,vm,1)
    ex={}
    ex[k]=stats_gather_items(1)+[(f'global_load_dword v{PF}, v14, {pWS} sc1','f3e')]
    def sig3e():
        vm.wait('H0'); a('s_barrier'); flag_by_w3(g,F3E,'s63',PF+2)
    ex.setdefault(6*o.get('f3e_at',12),[]).append(sig3e)
    spread(w2[NA:],k+1,120,ex)
    g1_loop(g,vm,1,ex,{4:['xr4'],10:['xr9']},lambda n: stats_publish2(g,vm,1,n))
    g.stamp(23)
    stats_use(g,vm,1)
    g1_epilogue(g,vm,1)
    g.stamp(24)
    if g.stop=='g1':
        a('s_waitcnt vmcnt(0)'); epoch_update(g); return
    if 'f3e' not in vm.q: vm.q=['f3e']+vm.q
    check_flag(g,vm,'f3e',PF,14)
    for L in h_loads(g,0): emit(vm,L)
    vm.wait('H1'); a('s_barrier'); flag_by_w3(g,F3L,'s63',4)
    g.stamp(25)
    ex={}; hl=h_loads(g,1)
    kc=o.get('f3l_chk',8)
    ex[10*(kc-2)]=[(f'global_load_dword v6, v15, {pWS} sc1','f3l')]
    ex[10*kc]=[lambda: check_flag(g,vm,'f3l',6,15)]
    early=[s for s in range(3,kc)]
    g2_loop(g,vm,0,ex)
    g.stamp(26)
    hl0=hl[0][0]
    a(hl0)
    def himm(s,k): return (2*s+k)*1024
    vmH=[]
    a('s_add_u32 s68, s68, 8192\ns_addc_u32 s69, s69, 0\ns_add_u32 s70, s68, 8192\ns_addc_u32 s71, s69, 0\ns_sub_u32 s72, s68, 8192\ns_subb_u32 s73, s69, 0')
    def hload(s):
        for k in range(2):
            r=HBUF+8*s+4*k; b={0:72,1:68,2:70}[s//4]
            vm.op(f'global_load_dwordx4 v[{r}:{r+3}], v2, s[{b}:{b+1}] offset:{((2*s+k)%8)*1024-4096} sc1',f'h1_{s}')
    g.late_order=[8,9,10,11,0,1,2,3,4,5,6,7]
    for s in range(8,12): hload(s)
    X,Y=g2_epilogue(g,vm,0,16)
    g2_final(g,vm,0,16,X,Y,54)
    for s in range(0,8): hload(s)
    g.stamp(27)
    g2_loop_order(g,vm,1,g.late_order)
    g.stamp(28)
    X,Y=g2_epilogue(g,vm,1,16)
    g2_final(g,vm,1,16,X,Y,56)
    epoch_update(g)

def g2_loop_order(g, vm, stage, order):
    a=g.a
    def prep(s):
        b=HBUF+8*s
        vm.wait(f'h{stage}_{s}')
        a(f'v_swap_b32 v{b+2}, v{b+4}\nv_swap_b32 v{b+3}, v{b+5}')
    prep(order[0])
    for i,s in enumerate(order):
        b=HBUF+8*s; n=0
        for T in range(5):
            for L in range(2):
                c=A2+8*T+4*L
                a(f'v_mfma_f32_16x16x32_bf16 a[{c}:{c+3}], {w2reg(5*s+T)}, v[{b+4*L}:{b+4*L+3}], {"0" if i==0 else f"a[{c}:{c+3}]"}')
                if n==6 and i<11: prep(order[i+1])
                n+=1
```

```python
import sys, os
sys.path.insert(0, os.path.dirname(os.path.abspath(__file__)))
from asmlib import Asm
from layout import *

KNAME='adaLN_cond__ssm_conv_s4__dense_activation_silu__prompt_kernel'
sWG='s2'; sW='s3'
pX='s[16:17]'; pAre='s[18:19]'; pAim='s[20:21]'; pBre='s[22:23]'; pBim='s[24:25]'; pCre='s[26:27]'; pCim='s[28:29]'
pLdt='s[30:31]'; pD='s[32:33]'; pW1='s[36:37]'; pW2='s[38:39]'; pC='s[40:41]'; pWm='s[42:43]'; pOut='s[44:45]'; pWS='s[48:49]'
sTAG='s50'
LOG2E=0x3fb8aa3b; INV2PI=0x3e22f983
POLL_MAX=1<<16

class G:
    def __init__(self, stop=None, prof=False, opts=None):
        self.a=Asm(); self.stop=stop; self.prof=prof; self.n=0; self.o=opts or {}
        self.nprof=0
    def lab(self, base):
        self.n+=1; return f'L_{base}_{self.n}'
    def stamp(self, idx):
        if not self.prof: return
        a=self.a
        a(f'''s_memrealtime s[92:93]
        s_waitcnt lgkmcnt(0)
        v_writelane_b32 v7, s92, {idx}''')
    def stamp2(self, idx):
        if self.o.get('fine'): self.stamp(idx)
    def stamp_flush(self):
        if not self.prof: return
        a=self.a
        a(f'''s_lshl_b32 s92, {sWG}, 2
        s_add_u32 s92, s92, {sW}
        s_lshl_b32 s92, s92, 8
        s_add_u32 s92, s92, {PROF}
        v_lshl_add_u32 v6, v1, 2, s92
        global_store_dword v6, v7, {pWS}''')

    def poll(self, addrs, tmp, width=1, tagoff=0, sleep=2, pre_sleep=0):
        a=self.a; L=self.lab('poll'); D=self.lab('polld')
        if pre_sleep: a(f's_sleep {pre_sleep}')
        a(f's_mov_b32 s90, 0\n{L}:')
        for i,(va,imm) in enumerate(addrs):
            r=tmp+i*width
            dst=f'v{r}' if width==1 else f'v[{r}:{r+width-1}]'
            sfx={1:'dword',2:'dwordx2',4:'dwordx4'}[width]
            a(f'global_load_{sfx} {dst}, {va}, {pWS} offset:{imm} sc1')
        a('s_add_u32 s90, s90, 1\ns_waitcnt vmcnt(0)')
        for i in range(len(addrs)):
            r=tmp+i*width+tagoff
            if i==0: a(f'v_cmp_ne_u32 vcc, {sTAG}, v{r}')
            else: a(f'v_cmp_ne_u32 s[88:89], {sTAG}, v{r}\ns_nop 0\ns_or_b64 vcc, vcc, s[88:89]')
        a(f'''s_nop 0
        s_cbranch_vccz {D}
        s_cmp_gt_u32 s90, {POLL_MAX}
        s_cbranch_scc1 {D}
        s_sleep {sleep}
        s_branch {L}
        {D}:''')
    def flag_store(self, base, idx_sgpr, vt):
        a=self.a
        a(f'''s_lshl_b32 s88, {idx_sgpr}, 7
        s_add_u32 s88, s88, {base}
        v_mov_b32 v{vt}, s88
        v_mov_b32 v{vt+1}, {sTAG}
        s_mov_b64 exec, 1
        global_store_dword v{vt}, v{vt+1}, {pWS} sc1
        s_mov_b64 exec, -1''')

    def prologue(self):
        a=self.a
        a(f'''s_cmp_ge_u32 {sWG}, 256
        s_cbranch_scc1 L_EXIT
        s_load_dwordx16 s[16:31], s[0:1], 0
        s_load_dwordx16 s[32:47], s[0:1], 64
        s_load_dwordx2 s[48:49], s[0:1], 128
        s_getpc_b64 s[4:5]
        v_and_b32 v1, 63, v0
        v_lshrrev_b32 v2, 6, v0
        v_lshlrev_b32 v3, 4, v0
        v_readfirstlane_b32 {sW}, v2
        v_lshlrev_b32 v2, 4, v1
        s_mul_i32 s6, {sWG}, 10240
        v_add_u32 v3, s6, v3
        s_lshl_b32 s7, {sW}, 10
        s_add_u32 s7, s7, {L_XT}
        s_mov_b32 m0, s7
        s_mul_i32 s51, {sWG}, 3''')
        if self.prof: a('v_mov_b32 v7, 0')
        a(f'''s_waitcnt lgkmcnt(0)
        s_load_dword {sTAG}, {pWS}, {EPOCH}''')
        a(f'''global_load_lds_dwordx4 v3, {pX}
        s_add_u32 m0, s7, 4096
        v_add_u32 v3, 4096, v3
        global_load_lds_dwordx4 v3, {pX}
        s_cmp_ge_u32 {sW}, 2
        s_cbranch_scc1 L_X2
        s_add_u32 m0, s7, 8192
        v_add_u32 v3, 4096, v3
        global_load_lds_dwordx4 v3, {pX}
        L_X2:''')
        self.stamp(0)
        a(f'''s_cmp_eq_u32 {sW}, 3
        s_cbranch_scc1 L_W3_LOADS''')
        a(f'''s_cmp_ge_u32 {sWG}, {NCONV}
        s_cbranch_scc1 L_SIDE_LOADS
        s_add_u32 s52, s51, {sW}
        s_min_u32 s52, s52, 639
        s_mul_i32 s6, s52, 384
        v_lshl_add_u32 v4, v1, 2, s6
        v_lshl_add_u32 v5, v1, 1, s6
        s_lshr_b32 s7, s52, 1
        s_lshl_b32 s7, s7, 2
        s_load_dword s53, {pLdt}, s7''')
        for i,p in enumerate([pAre,pAim,pBre,pBim,pCre,pCim]):
            a(f'global_load_dword v{8+i}, v4, {p}')
        for i,p in enumerate([pAre,pAim,pBre,pBim,pCre,pCim]):
            a(f'global_load_ushort v{14+i}, v5, {p} offset:256')
        self.code_prefetch()
        self.kgen_prep()
        a('s_waitcnt vmcnt(%d)\ns_branch L_P1' % (12+self.npf))
        a('L_SIDE_LOADS:\ns_waitcnt vmcnt(0)\ns_branch L_P1')
        a(f'''L_W3_LOADS:
        s_cmp_ge_u32 {sWG}, 240
        s_cbranch_scc1 L_SIDE_LOADS
        s_mul_i32 s57, {sWG}, 1093
        s_lshr_b32 s57, s57, 16
        s_mul_i32 s6, s57, 60
        s_sub_u32 s58, {sWG}, s6
        s_mul_i32 s6, s57, 320
        v_lshrrev_b32 v4, 3, v1
        v_mad_u32_u24 v5, v4, 40, s6''')
        for i in range(5):
            a(f'global_load_dwordx2 v[{8+2*i}:{9+2*i}], v5, {pC} offset:{8*i}')
        a(f'''s_mul_i32 s54, {sWG}, 5462
        s_lshr_b32 s54, s54, 16
        s_mul_i32 s6, s54, 12
        s_sub_u32 s55, {sWG}, s6
        s_mul_i32 s6, s54, {32*3072}
        s_lshl_b32 s7, s55, 8
        s_add_u32 s6, s6, s7
        v_lshrrev_b32 v20, 4, v1
        v_mul_u32_u24 v20, 3072, v20
        v_and_b32 v21, 15, v1
        v_lshl_add_u32 v20, v21, 4, v20
        v_add_u32 v20, s6, v20''')
        for i in range(8):
            a(f's_mov_b32 m0, {L_W1+1024*i}')
            a(f'global_load_lds_dwordx4 v20, {pW1}' if i==0 else f'v_add_u32 v20, {4*3072}, v20\nglobal_load_lds_dwordx4 v20, {pW1}')
        a(f'''s_mov_b32 s6, {20*7680}
        v_mul_lo_u32 v4, v4, s6
        v_and_b32 v5, 7, v1
        v_lshl_add_u32 v4, v5, 4, v4
        s_mul_i32 s6, s57, {160*7680}
        s_lshl_b32 s7, s58, 7
        s_add_u32 s6, s6, s7
        v_add_u32 v4, s6, v4''')
        for i in range(20):
            a(f'global_load_dwordx4 v[{96+4*i}:{99+4*i}], v4, {pWm}')
            if i<19: a('v_add_u32 v4, 7680, v4')
        a('s_waitcnt vmcnt(33)')
        a('L_P1:')
    def code_prefetch(self):
        a=self.a
        self.npf=0
        n=self.o.get('pf_lines',0)
        if not n: return
        k=(n+191)//192
        L=self.lab('nopf')
        a(f'''v_lshlrev_b32 v6, 7, v1
        s_mul_i32 s6, {sW}, {k*64*128}
        v_add_u32 v6, s6, v6''')
        for i in range(k):
            a(f'v_min_u32 v20, {(n-1)*128}, v6\nglobal_load_dword v{250+i}, v20, s[4:5]')
            if i<k-1: a('v_add_u32 v6, 8192, v6')
        self.npf=k

    def p1(self):
        a=self.a
        a(f'''v_mov_b32 v20, 0
        v_mov_b32 v21, 0
        v_mov_b32 v22, 0
        v_mov_b32 v23, 0
        v_lshlrev_b32 v24, 4, v0
        v_cmp_gt_u32 vcc, 90, v0
        v_add_u32 v24, {L_XH}, v24
        v_mov_b32 v25, {L_CNT}
        v_cndmask_b32 v24, v25, v24, vcc
        ds_write_b128 v24, v[20:23]
        v_lshrrev_b32 v4, 5, v1
        s_lshl_b32 s6, {sW}, 1
        v_add_u32 v4, s6, v4
        v_mul_u32_u24 v5, 1280, v4
        v_and_b32 v6, 31, v1
        v_lshl_add_u32 v5, v6, 3, v5
        v_add_u32 v5, {L_XT}, v5
        v_bfe_u32 v26, v1, 2, 2
        v_mul_u32_u24 v26, 1280, v26
        v_lshrrev_b32 v27, 4, v1
        v_lshl_add_u32 v26, v27, 5, v26
        v_and_b32 v27, 3, v1
        v_lshl_add_u32 v26, v27, 3, v26
        v_add_u32 v26, {L_XT}, v26
        s_waitcnt lgkmcnt(0)
        s_barrier''')
        self.stamp(1)
        for i in range(5):
            a(f'ds_read_b64 v[{28+2*i}:{29+2*i}], v5 offset:{256*i}')
        a(f'''v_lshrrev_b32 v64, 2, v1
        v_lshlrev_b32 v64, 14, v64
        v_lshl_add_u32 v64, v27, 4, v64
        s_lshl_b32 s6, {sWG}, 6
        v_add_u32 v64, s6, v64
        v_mov_b32 v38, 0
        v_mov_b32 v39, 0
        v_mov_b32 v40, 0x3f803f80''')
        a(f'''s_lshl_b32 s6, {sW}, 7
        v_add_u32 v65, s6, v26''')
        for k in range(4):
            off=k*384
            a(f'ds_read_b64_tr_b16 v[{66+4*k}:{67+4*k}], v65 offset:{off}')
            a(f'ds_read_b64_tr_b16 v[{68+4*k}:{69+4*k}], v65 offset:{off+5120}')
        a('s_waitcnt lgkmcnt(8)')
        for i in range(10):
            a(f'v_dot2c_f32_bf16 v38, v{28+i}, v40')
            a(f'v_dot2c_f32_bf16 v39, v{28+i}, v{28+i}')
        a('''s_nop 2
        v_permlane16_swap_b32 v38, v39
        v_add_f32 v38, v38, v39
        v_add_f32_dpp v38, v38, v38 quad_perm:[1,0,3,2] row_mask:0xf bank_mask:0xf
        v_add_f32_dpp v38, v38, v38 quad_perm:[2,3,0,1] row_mask:0xf bank_mask:0xf
        v_add_f32_dpp v38, v38, v38 row_half_mirror row_mask:0xf bank_mask:0xf
        v_add_f32_dpp v38, v38, v38 row_mirror row_mask:0xf bank_mask:0xf
        v_mov_b32 v39, v38
        v_permlane16_swap_b32 v38, v39
        v_mul_f32 v38, 0x3acccccd, v38
        v_mul_f32 v39, 0x3acccccd, v39
        v_fma_f32 v39, -v38, v38, v39
        v_max_f32 v39, 0, v39
        v_cvt_pk_bf16_f32 v41, v38, v39
        v_and_b32 v39, 0xffff0000, v41
        v_lshlrev_b32 v38, 16, v41
        v_add_f32 v39, 0x3727c5ac, v39
        v_cvt_pk_bf16_f32 v39, v39, v39
        v_lshlrev_b32 v39, 16, v39
        v_sqrt_f32 v39, v39
        v_cvt_pk_bf16_f32 v39, v39, v39
        v_lshlrev_b32 v39, 16, v39
        v_rcp_f32 v39, v39
        v_lshlrev_b32 v4, 2, v4
        v_mul_f32 v38, -v38, v39''')
        a(f'''ds_write2_b32 v4, v39, v38 offset0:0 offset1:8 ; placeholder'''.replace('ds_write2_b32 v4, v39, v38 offset0:0 offset1:8 ; placeholder', f'v_add_u32 v4, {L_ST}, v4\nds_write2_b32 v4, v39, v38 offset0:0 offset1:8'))
        a(f'''s_waitcnt lgkmcnt(0)
        s_add_u32 {sTAG}, {sTAG}, 1
        s_barrier''')
        self.stamp(2)
        a(f'''s_cmp_eq_u32 {sW}, 3
        s_cbranch_scc1 L_W3_P1
        v_mov_b32 v4, {L_ST}
        ds_read_b128 v[44:47], v4
        ds_read_b128 v[48:51], v4 offset:16
        ds_read_b128 v[52:55], v4 offset:32
        ds_read_b128 v[56:59], v4 offset:48
        s_mul_i32 s6, {sW}, 262144
        s_add_u32 s6, s6, {XH}
        v_add_u32 v65, s6, v64
        s_waitcnt lgkmcnt(0)''')
        for k in range(4):
            if k==3: a(f's_cmp_lg_u32 {sW}, 0\ns_cbranch_scc1 L_XH_3')
            for p in range(4):
                r=66+4*k+p
                a(f'''v_and_b32 v{85+2*(p&1)}, 0xffff0000, v{r}
                v_lshlrev_b32 v{84+2*(p&1)}, 16, v{r}
                v_pk_fma_f32 v[{84+2*(p&1)}:{85+2*(p&1)}], v[{84+2*(p&1)}:{85+2*(p&1)}], v[{44+2*p}:{45+2*p}], v[{52+2*p}:{53+2*p}]
                v_cvt_pk_bf16_f32 v{r}, v{84+2*(p&1)}, v{85+2*(p&1)}''')
            a(f'global_store_dwordx4 v65, v[{66+4*k}:{69+4*k}], {pWS} sc1')
            if k<3: a(f'v_add_u32 v65, {3*262144}, v65')
        a('s_waitcnt vmcnt(4)\ns_branch L_XH_DONE\nL_XH_3:\ns_waitcnt vmcnt(3)\nL_XH_DONE:')
        self.stamp(3)

    def signal_lds(self, cnt, n, base, idx, vt):
        a=self.a; L=self.lab('sig')
        a(f'''v_mov_b32 v{vt}, {L_CNT+4*cnt}
        v_mov_b32 v{vt+1}, 1
        s_mov_b64 exec, 1
        ds_add_rtn_u32 v{vt}, v{vt}, v{vt+1}
        s_mov_b64 exec, -1
        s_waitcnt lgkmcnt(0)
        v_readfirstlane_b32 s88, v{vt}
        s_cmp_lg_u32 s88, {n-1}
        s_cbranch_scc1 {L}''')
        self.flag_store(base, idx, vt)
        a(f'{L}:')

    def cmul(self, d, x, y):
        return [f'v_pk_mul_f32 v[{d}:{d+1}], v[{x}:{x+1}], v[{y}:{y+1}] op_sel_hi:[0,1]',
                f'v_pk_fma_f32 v[{d}:{d+1}], v[{x}:{x+1}], v[{y}:{y+1}], v[{d}:{d+1}] op_sel:[1,1,0] op_sel_hi:[1,0,1] neg_lo:[1,0,0]']
    def kgen(self):
        a=self.a
        ROW=272; YB=0; XB=YB+32*ROW
        vWA=4
        vRA=5
        a(f'''s_cmp_ge_u32 {sWG}, {NCONV}
        s_cbranch_scc1 L_SIDE_W2
        s_mul_i32 s59, {sW}, {KSA}
        s_mov_b32 m0, s59
        v_and_b32 v20, 31, v1
        v_mul_u32_u24 v20, {ROW}, v20
        v_lshrrev_b32 v21, 5, v1
        v_lshl_add_u32 v20, v21, 4, v20
        v_add_u32 v{vRA}, s59, v20
        s_bitcmp1_b32 s52, 0
        s_cselect_b32 s6, 0, 16
        s_lshl_b32 s6, s53, s6
        s_and_b32 s6, s6, 0xffff0000
        v_mov_b32 v20, {hex(LOG2E)}
        v_mul_f32 v20, s6, v20
        v_exp_f32 v20, v20
        v_mov_b32 v21, 0x3f80
        v_cvt_pk_bf16_f32 v20, v20, v20
        ds_write_addtid_b32 v21 offset:{YB}
        v_lshlrev_b32 v6, 16, v20''')
        vDT=6
        EA=20; BR=21; W=22; T=24
        Y=32
        Z1=64; Z2=66; Z4=68; P256=70; P512=72; P1024=74
        X=76
        CV=118
        TM=126
        ACC=136
        OP=152
        cvn=[0]
        def emit_val(reg,row,isx):
            c=CV+(cvn[0]%8); cvn[0]+=1
            neg='-' if isx else ''
            return [f'v_cvt_pk_bf16_f32 v{c}, v{reg}, {neg}v{reg+1}', f'ds_write_addtid_b32 v{c} offset:{(XB if isx else YB)+row*ROW}']
        def direct(dst,e,t):
            import struct
            fe=hex(struct.unpack('<I',struct.pack('<f',float(e)))[0])
            m = (lambda d,s: f'v_mov_b32 v{d}, v{s}') if e==1 else (lambda d,s: f'v_mul_f32 v{d}, {fe}, v{s}')
            return [m(t,EA), m(t+1,BR), f'v_exp_f32 v{t}, v{t}', f'v_fract_f32 v{t+1}, v{t+1}',
                    f'v_cos_f32 v{dst}, v{t+1}', f'v_sin_f32 v{dst+1}, v{t+1}',
                    f'v_pk_mul_f32 v[{dst}:{dst+1}], v[{dst}:{dst+1}], v[{t}:{t+1}] op_sel_hi:[1,0]']
        def ilv(*seqs):
            out=[]; n=max(len(s) for s in seqs)
            for i in range(n):
                for s in seqs:
                    if i<len(s): out.append(s[i])
            return out
        yr=lambda j: Y+2*(j-1)
        xr=lambda i: X+2*i
        pend_mfma=[]
        for ch in range(3):
            S=[]; cvn[0]=0
            src=[8+i for i in range(6)] if ch<2 else [14+i for i in range(6)]
            up=(lambda d,s: f'v_and_b32 v{d}, 0xffff0000, v{s}') if ch==1 else (lambda d,s: f'v_lshlrev_b32 v{d}, 16, v{s}')
            S+= [up(EA,src[0]), up(BR,src[1]), up(T,src[2]), up(T+1,src[3]), up(T+2,src[4]), up(T+3,src[5])]
            S+= [f'v_pk_mul_f32 v[{EA}:{BR}], v[{EA}:{BR}], v[{vDT}:{vDT+1}] op_sel_hi:[1,0]',
                 f'v_pk_mul_f32 v[{T}:{T+1}], v[{T}:{T+1}], v[{vDT}:{vDT+1}] op_sel_hi:[1,0]',
                 f'v_mul_f32 v{EA}, {hex(LOG2E)}, v{EA}', f'v_mul_f32 v{BR}, {hex(INV2PI)}, v{BR}']
            S+= self.cmul(xr(0),T+2,T)
            S+= ilv(direct(yr(8),64,TM+2), direct(Z1,1,TM+4))
            S+= ilv(self.cmul(yr(16),yr(8),yr(8)), self.cmul(Z2,Z1,Z1))
            S+= ilv(self.cmul(P256,yr(16),yr(16)), self.cmul(Z4,Z2,Z2))
            S+= ilv(self.cmul(P512,P256,P256), self.cmul(yr(1),Z4,Z4))
            S+= ilv(self.cmul(P1024,P512,P512), self.cmul(yr(2),yr(1),yr(1)))
            S+= ilv(self.cmul(yr(4),yr(2),yr(2)), self.cmul(yr(3),yr(2),yr(1)))
            head=S; S=[]
            E=[]
            for j in (1,2,8,16,4,3): E+=emit_val(yr(j),j,False)
            M=[(yr(5),yr(4),yr(1)),(yr(6),yr(4),yr(2)),(yr(7),yr(4),yr(3))]
            M+=[(xr(1),xr(0),Z1),(xr(2),xr(0),Z2),(xr(4),xr(0),Z4)]
            M+=[(yr(8+k),yr(8),yr(k)) for k in range(1,8)]
            M+=[(xr(3),xr(1),Z2),(xr(5),xr(1),Z4),(xr(6),xr(2),Z4),(xr(8),xr(0),P256),(xr(12),xr(0),P512),(xr(16),xr(0),P1024)]
            M+=[(xr(7),xr(3),Z4),(xr(9),xr(2),P256),(xr(10),xr(4),P256),(xr(11),xr(6),P256),(xr(13),xr(4),P512),(xr(14),xr(8),P512)]
            M+=[(xr(15),xr(10),P512),(xr(17),xr(8),P1024),(xr(18),xr(12),P1024),(xr(19),xr(14),P1024),(xr(20),xr(16),P1024)]
            rowof={}
            for j in range(1,17): rowof[yr(j)]=(j,False)
            for i in range(21): rowof[xr(i)]=(i,True)
            E+=emit_val(xr(0),0,True)
            body=[]; wq=[]; pm=list(pend_mfma)
            def flush():
                if pm: body.append(pm.pop(0))
                body.extend(wq[:5])
                if len(pm)==7-0 and False: pass
                body.extend(wq[5:]); wq.clear()
            def put(pair):
                body.append(pair[0]); wq.append(pair[1])
                if len(wq)==8: flush()
            for i in range(0,len(E),2): put(E[i:i+2])
            allM=[(d,x,y,rowof[d]) for d,x,y in M]+[(TM+2*(k%4),yr(16),yr(k+1),(17+k,False)) for k in range(15)]
            for i in range(0,len(allM),2):
                grp=allM[i:i+2]
                body+=ilv(*[self.cmul(d,x,y) for d,x,y,_ in grp])
                for d,x,y,(row,isx) in grp: put(emit_val(d,row,isx))
            flush()
            body.extend(pm)
            if pend_mfma: head.append('s_waitcnt lgkmcnt(0)')
            for x in head+body: a(x)
            self.stamp2(6+ch)
            if ch==0:
                a('s_waitcnt vmcnt(0)')
                self.signal_lds(0,3,F1,sWG,T)
                self.stamp(4)
            a('s_waitcnt lgkmcnt(0)')
            for s in range(8):
                a(f'ds_read_b128 v[{OP+8*s}:{OP+8*s+3}], v{vRA} offset:{XB+32*s}')
                a(f'ds_read_b128 v[{OP+8*s+4}:{OP+8*s+7}], v{vRA} offset:{YB+32*s}')
            pend_mfma=[f'v_mfma_f32_32x32x16_bf16 v[{ACC}:{ACC+15}], v[{OP+8*s}:{OP+8*s+3}], v[{OP+8*s+4}:{OP+8*s+7}], {"0" if (ch==0 and s==0) else f"v[{ACC}:{ACC+15}]"}' for s in range(8)]
        for s in range(8):
            a(f's_waitcnt lgkmcnt({min(15,14-2*s)})' if s<7 else 's_waitcnt lgkmcnt(0)')
            a(pend_mfma[s])
        self.stamp2(9)
        for r in range(12): a(f'v_cvt_pk_bf16_f32 v{ACC+r}, v{ACC+r}, v{ACC+r}')
        a(f'''ds_write_b128 v216, v[{ACC}:{ACC+3}]
        s_mov_b32 exec_hi, 0
        ds_write_b128 v217, v[{ACC+4}:{ACC+7}] offset:1024
        ds_write_b32 v219, v{ACC+8} offset:2048
        ds_write_b32 v219, v{ACC+9} offset:{2048+128}
        ds_write_b32 v219, v{ACC+10} offset:{2048+256}
        ds_write_b32 v219, v{ACC+11} offset:{2048+384}
        s_not_b64 exec, exec
        ds_write_b64 v218, v[{ACC+4}:{ACC+5}] offset:1536
        ds_write_b64 v218, v[{ACC+6}:{ACC+7}] offset:{1536+256}
        ds_write_b32 v219, v{ACC+8} offset:2560
        s_mov_b64 exec, -1
        v_mov_b32 v20, 0
        s_waitcnt lgkmcnt(0)
        ds_write_b32 v233, v20''')
        GV={}; r=32
        for g in range(16):
            GV[g]=r; r+= 4 if g<4 else 2
        for g in range(16):
            v=GV[g]
            if g<2:
                a(f'ds_read2_b32 v[{v}:{v+1}], v220 offset0:{128*g} offset1:{128*g+1}')
                a(f'ds_read_b32 v{v+2}, v220 offset:{512*g+8}')
            elif g<4:
                for k in range(3): a(f'ds_read_b32 v{v+k}, v{221+3*(g-2)+k}')
            elif g<8: a(f'ds_read2_b32 v[{v}:{v+1}], v227 offset0:{32*(g-4)} offset1:{32*(g-4)+1}')
            else: a(f'ds_read2_b32 v[{v}:{v+1}], v230 offset0:{16*(g-8)} offset1:{16*(g-8)+1}')
        self.stamp2(10)
        EO=80
        def perms(g):
            v=GV[g]; e=EO+2*g
            if g<4:
                a(f'v_perm_b32 v{e}, v{v+1}, v{v+2}, s60')
                a(f'v_perm_b32 v{e+1}, v{v}, v{v+1}, s60')
            else:
                sel=228 if g<8 else 231
                a(f'v_perm_b32 v{e}, v{v+1}, v{v}, v{sel}')
                a(f'v_perm_b32 v{e+1}, v{v+1}, v{v}, v{sel+1}')
        def writes(gs):
            for grp in range(2):
                a(f's_add_u32 m0, s59, {0 if grp==0 else KMB}')
                for g in gs:
                    for sig in range(8):
                        if (sig>>1)&1!=grp: continue
                        off=kbase(sig,0)-(KMB if grp else 0)+4*(957+(sig>>1)-64*g)
                        a(f'ds_write_addtid_b32 v{EO+2*g+(0 if sig&1 else 1)} offset:{off}')
        a('s_mov_b32 s60, 0x05040100\ns_waitcnt lgkmcnt(8)')
        for g in range(8): perms(g)
        a('s_waitcnt lgkmcnt(0)')
        for g in range(8,16): perms(g)
        writes(range(8))
        self.stamp2(11)
        writes(range(8,16))
        self.stamp(5)

    def kgen_prep(self):
        a=self.a
        a(f'''s_mul_i32 s6, {sW}, {TTS}
        s_add_u32 s6, s6, {L_TT+16}
        v_and_b32 v20, 31, v1
        v_lshrrev_b32 v21, 5, v1
        v_lshlrev_b32 v216, 5, v20
        v_lshl_add_u32 v216, v21, 4, v216
        v_add_u32 v216, s6, v216
        v_lshl_add_u32 v217, v20, 4, s6
        v_lshl_add_u32 v218, v20, 3, s6
        v_lshl_add_u32 v219, v20, 2, s6
        v_lshlrev_b32 v20, 1, v1
        v_sub_u32 v20, 125, v20
        v_lshl_add_u32 v220, v20, 2, s6
        s_sub_u32 s7, s6, 4
        v_mov_b32 v22, s7
        v_mov_b32 v23, 0
        ds_write_b32 v22, v23
        s_add_u32 s7, s6, {4*(128-0x4300)&0xffffffff}''')
        def idx(dst,tap0):
            a(f'''v_add_u32 v{dst}, {tap0}, v20
            v_cvt_f32_u32 v{dst}, v{dst}
            v_cvt_pk_bf16_f32 v{dst}, v{dst}, 0''')
        for g in (2,3):
            for k in range(3):
                d=221+3*(g-2)+k
                idx(d,128*g+k); a(f'v_lshl_add_u32 v{d}, v{d}, 2, s7')
        for g,d in ((4,227),(8,230)):
            idx(d,128*g); idx(d+1,128*g+2); idx(d+2,128*g+1)
            a(f'''v_sub_u32 v{d+1}, v{d+1}, v{d}
            v_sub_u32 v{d+2}, v{d+2}, v{d}
            v_lshl_add_u32 v{d}, v{d}, 2, s7
            v_mul_u32_u24 v{d+1}, 0x0404, v{d+1}
            v_mul_u32_u24 v{d+2}, 0x0404, v{d+2}
            v_lshl_add_u32 v{d+1}, v{d+2}, 16, v{d+1}
            v_add_u32 v{d+1}, 0x01000100, v{d+1}
            v_add_u32 v{d+2}, 0x01000100, v{d+2}''')
        a(f'''v_lshrrev_b32 v21, 3, v1
        v_and_b32 v22, 1, v21
        v_lshrrev_b32 v23, 2, v21
        v_lshl_add_u32 v22, v22, 1, v23
        v_mul_u32_u24 v22, 4128, v22
        v_bfe_u32 v23, v21, 1, 1
        v_mul_u32_u24 v23, {KRB}, v23
        v_add_u32 v22, v22, v23
        v_lshrrev_b32 v21, 1, v21
        v_and_b32 v23, 7, v1
        v_min_u32 v23, 6, v23
        v_add_u32 v21, v21, v23
        v_lshl_add_u32 v22, v21, 2, v22
        s_mul_i32 s6, {sW}, {KSA}
        s_add_u32 s6, s6, {16+4*1021}
        v_add_u32 v233, s6, v22''')

    def relayout_tiles(self, vtr, ntiles, ldsoff, rowbytes, dstregs, addr_fn):
        a=self.a
        for t in range(ntiles):
            r=dstregs+4*t
            a(f'ds_read_b64_tr_b16 v[{r}:{r+1}], v{vtr} offset:{ldsoff+32*t}')
            a(f'ds_read_b64_tr_b16 v[{r+2}:{r+3}], v{vtr} offset:{ldsoff+32*t+16*rowbytes}')
        for t in range(ntiles):
            r=dstregs+4*t
            addr_fn(t)
            a(f's_waitcnt lgkmcnt({min(15,2*(ntiles-1-t))})')
            a(f'global_store_dwordx4 v2, v[{r}:{r+3}], s[6:7] sc1')

    def w3_p1(self):
        a=self.a
        a('L_W3_P1:')
        a(f'v_add_u32 v65, {XT}, v64')
        for half in range(2):
            for k in range(5):
                u=5*half+k
                a(f'ds_read_b64_tr_b16 v[{28+4*k}:{29+4*k}], v26 offset:{128*u}')
                a(f'ds_read_b64_tr_b16 v[{30+4*k}:{31+4*k}], v26 offset:{128*u+5120}')
            for k in range(5):
                a(f's_waitcnt lgkmcnt({8-2*k})')
                a(f'global_store_dwordx4 v65, v[{28+4*k}:{31+4*k}], {pWS} sc1')
                a(f'v_add_u32 v65, 262144, v65')
        a(f'''s_cmp_ge_u32 {sWG}, 240
        s_cbranch_scc1 L_W3_NOMOD
        s_waitcnt vmcnt(38)''')
        for i in range(0,20,2):
            s=8+i//2; d=176+i
            a(f'''v_lshlrev_b32 v{d}, 16, v{s}
            v_and_b32 v{d+1}, 0xffff0000, v{s}
            v_mul_f32 v48, 0xbfb8aa3b, v{d}
            v_mul_f32 v49, 0xbfb8aa3b, v{d+1}
            v_exp_f32 v48, v48
            v_exp_f32 v49, v49
            v_add_f32 v48, 1.0, v48
            v_add_f32 v49, 1.0, v49
            v_rcp_f32 v48, v48
            v_rcp_f32 v49, v49
            v_mul_f32 v48, v48, v{d}
            v_mul_f32 v49, v49, v{d+1}
            v_cvt_pk_bf16_f32 v48, v48, v49
            v_lshlrev_b32 v{d}, 16, v48
            v_and_b32 v{d+1}, 0xffff0000, v48''')
        a(f'''v_lshrrev_b32 v4, 2, v1
        v_lshlrev_b32 v4, 8, v4
        v_and_b32 v5, 3, v1
        v_lshl_add_u32 v4, v5, 3, v4
        v_add_u32 v4, {L_W1}, v4
        s_lshl_b32 s55, s55, 3
        s_mul_i32 s54, s54, 3072
        s_add_u32 s54, s54, {W1P}
        s_waitcnt vmcnt(30)''')
        def addr1(t):
            a(f'''s_add_u32 s8, s55, {t}
            s_mul_i32 s9, s8, 21846
            s_lshr_b32 s9, s9, 16
            s_mul_i32 s10, s9, {20*3072-3*1024}
            s_lshl_b32 s8, s8, 10
            s_add_u32 s8, s8, s10
            s_add_u32 s8, s8, s54
            s_add_u32 s6, s48, s8
            s_addc_u32 s7, s49, 0''')
        self.relayout_tiles(4,8,0,256,28,addr1)
        for j in range(8): a(f'v_mov_b32 v{196+j}, 0')
        for i in range(20):
            a(f's_waitcnt vmcnt({37-i})')
            for p in range(4):
                r=96+4*i+p
                a(f'''v_lshlrev_b32 v{60+2*(p&1)}, 16, v{r}
                v_and_b32 v{61+2*(p&1)}, 0xffff0000, v{r}
                v_pk_fma_f32 v[{196+2*p}:{197+2*p}], v[{60+2*(p&1)}:{61+2*(p&1)}], v[{176+(i&~1)}:{177+(i&~1)}], v[{196+2*p}:{197+2*p}] op_sel:[0,{i&1},0] op_sel_hi:[1,{i&1},1]''')
        for j in range(4): a(f'v_permlane32_swap_b32 v{196+j}, v{200+j}')
        for j in range(4): a(f'v_add_f32 v{196+j}, v{196+j}, v{200+j}')
        for j in range(2): a(f'v_permlane16_swap_b32 v{196+j}, v{198+j}')
        for j in range(2): a(f'v_add_f32 v{196+j}, v{196+j}, v{198+j}')
        a(f'''v_add_f32_dpp v196, v196, v196 row_ror:8 row_mask:0xf bank_mask:0xf
        v_add_f32_dpp v197, v197, v197 row_ror:8 row_mask:0xf bank_mask:0xf
        v_bfe_u32 v4, v1, 3, 1
        v_cmp_eq_u32 vcc, 1, v4
        v_bfe_u32 v5, v1, 4, 1
        v_lshl_add_u32 v4, v5, 1, v4
        v_cndmask_b32 v196, v196, v197, vcc
        v_lshrrev_b32 v5, 5, v1
        v_lshl_add_u32 v4, v5, 2, v4
        v_and_b32 v5, 7, v1
        v_lshl_add_u32 v4, v5, 3, v4
        s_mul_i32 s6, s57, {3840*8}
        s_lshl_b32 s7, s58, 9
        s_add_u32 s6, s6, s7
        s_add_u32 s6, s6, {MODP}
        v_lshl_add_u32 v4, v4, 3, s6
        v_mov_b32 v197, {sTAG}
        global_store_dwordx2 v4, v[196:197], {pWS} sc1
        L_W3_NOMOD:
        s_waitcnt vmcnt(0)''')
        self.flag_store(F1B,sWG,4)
        self.stamp(4)

    def side_w2(self):
        a=self.a
        a(f'''L_SIDE_W2:
        s_waitcnt vmcnt(0)''')
        self.signal_lds(0,3,F1,sWG,24)
        a(f'''s_sub_u32 s52, {sWG}, {NCONV}
        s_mul_i32 s52, s52, 3
        s_add_u32 s52, s52, {sW}
        s_lshl_b32 s56, {sW}, 14
        v_lshrrev_b32 v20, 3, v1
        v_mul_u32_u24 v20, 1280, v20
        v_and_b32 v21, 7, v1
        v_lshl_add_u32 v20, v21, 4, v20
        v_lshrrev_b32 v4, 2, v1
        v_lshlrev_b32 v4, 7, v4
        v_and_b32 v5, 3, v1
        v_lshl_add_u32 v4, v5, 3, v4
        v_add_u32 v4, s56, v4''')
        for r in range(4):
            a(f'''s_add_u32 s8, s52, {126*r}
            s_min_u32 s8, s8, 479
            s_mul_i32 s9, s8, 6554
            s_lshr_b32 s{60+2*r}, s9, 16
            s_mul_i32 s9, s{60+2*r}, 10
            s_sub_u32 s{61+2*r}, s8, s9
            s_mul_i32 s8, s{60+2*r}, {32*1280}
            s_lshl_b32 s9, s{61+2*r}, 7
            s_add_u32 s8, s8, s9
            v_add_u32 v21, s8, v20''')
            for i in range(4):
                a(f's_add_u32 m0, s56, {4096*r+1024*i}')
                a(f'global_load_lds_dwordx4 v21, {pW2}' if i==0 else f'v_add_u32 v21, {8*1280}, v21\nglobal_load_lds_dwordx4 v21, {pW2}')
        for r in range(4):
            a(f's_waitcnt vmcnt({12-4*r+4*r})'.replace(f'({12})','(12)'))
            def addr2(t,r=r):
                a(f'''s_lshl_b32 s8, s{61+2*r}, 2
                s_add_u32 s8, s8, {t}
                s_mul_i32 s9, s8, 13108
                s_lshr_b32 s9, s9, 16
                s_mul_i32 s10, s9, 5
                s_sub_u32 s8, s8, s10
                s_mul_i32 s10, s{60+2*r}, 5462
                s_lshr_b32 s10, s10, 16
                s_sub_u32 s10, s8, s10
                s_and_b32 s10, s10, 3
                s_cmp_eq_u32 s8, 4
                s_cselect_b32 s8, 4, s10
                s_mul_i32 s9, s9, 240
                s_add_u32 s8, s8, s9
                s_mul_i32 s10, s{60+2*r}, 5
                s_add_u32 s8, s8, s10
                s_lshl_b32 s8, s8, 10
                s_add_u32 s8, s8, {W2P}
                s_add_u32 s6, s48, s8
                s_addc_u32 s7, s49, 0''')
            self.relayout_tiles(4,4,4096*r,128,28+16*(r&1),addr2)
        a('s_waitcnt vmcnt(0)')
        self.signal_lds(1,3,FW2,sWG,24)

    def finish(self):
        a=self.a
        a('L_FIN:')
        self.stamp(31)
        self.stamp_flush()
        a('L_EXIT:\ns_endpgm')

    def build(self):
        from phases2 import rest
        a=self.a
        self.prologue(); self.p1(); self.kgen()
        rest(self)
        self.finish()
        n=a.fix()
        e=sum(a.check_waits(env={'s2':wg,'s3':w}) for wg in (0,213,214,240) for w in range(4))
        al=a.align()
        hdr=open(os.path.join(os.path.dirname(os.path.abspath(__file__)),'header.txt')).read()
        s=hdr+f'; @launch grid=(256,1,1) block=(256,1,1) lds={LDS_BYTES}\n'
        s+=f'.amdgcn_target "amdgcn-amd-amdhsa--gfx950"\n.text\n.globl {KNAME}\n.p2align 8\n.type {KNAME},@function\n{KNAME}:\n'
        s+=a.text()
        s+=f'''.section .rodata,"a"
.p2align 6
.amdhsa_kernel {KNAME}
  .amdhsa_next_free_vgpr 512
  .amdhsa_next_free_sgpr 102
  .amdhsa_accum_offset 256
  .amdhsa_group_segment_fixed_size 0
  .amdhsa_kernarg_size 136
  .amdhsa_user_sgpr_count 2
  .amdhsa_user_sgpr_kernarg_segment_ptr 1
  .amdhsa_system_sgpr_workgroup_id_x 1
.end_amdhsa_kernel
'''
        print(f'[gen] {len(a.L)} lines, {n} hazard nops, {e} wait errors, align {al}', file=sys.stderr)
        return s

if __name__=='__main__':
    import argparse
    ap=argparse.ArgumentParser(); ap.add_argument('-o',default='out.s'); ap.add_argument('--stop'); ap.add_argument('--prof',action='store_true'); ap.add_argument('--opt',action='append',default=[])
    x=ap.parse_args()
    opts={k:int(v,0) for k,v in (o.split('=') for o in x.opt)}
    open(x.o,'w').write(G(x.stop,x.prof,opts).build())
```

```python
import sys, os
sys.path.insert(0, os.path.dirname(os.path.abspath(__file__)))
from asmlib import Asm
from layout import *

KNAME='adaLN_cond__ssm_conv_s4__dense_activation_silu__prompt_kernel'
sWG='s2'; sW='s3'
pX='s[16:17]'; pAre='s[18:19]'; pAim='s[20:21]'; pBre='s[22:23]'; pBim='s[24:25]'; pCre='s[26:27]'; pCim='s[28:29]'
pLdt='s[30:31]'; pD='s[32:33]'; pW1='s[36:37]'; pW2='s[38:39]'; pC='s[40:41]'; pWm='s[42:43]'; pOut='s[44:45]'; pWS='s[48:49]'
sTAG='s50'
LOG2E=0x3fb8aa3b; INV2PI=0x3e22f983
POLL_MAX=1<<16

class G:
    def __init__(self, stop=None, prof=False, opts=None):
        self.a=Asm(); self.stop=stop; self.prof=prof; self.n=0; self.o=opts or {}
        self.nprof=0
    def lab(self, base):
        self.n+=1; return f'L_{base}_{self.n}'
    def stamp(self, idx):
        if not self.prof: return
        a=self.a
        a(f'''s_memrealtime s[92:93]
        s_waitcnt lgkmcnt(0)
        v_writelane_b32 v7, s92, {idx}''')
    def stamp2(self, idx):
        if self.o.get('fine'): self.stamp(idx)
    def stamp_flush(self):
        if not self.prof: return
        a=self.a
        a(f'''s_lshl_b32 s92, {sWG}, 2
        s_add_u32 s92, s92, {sW}
        s_lshl_b32 s92, s92, 8
        s_add_u32 s92, s92, {PROF}
        v_lshl_add_u32 v6, v1, 2, s92
        global_store_dword v6, v7, {pWS}''')
        if self.o.get('dbgwg') is not None:
            L=self.lab('dbg')
            a(f'''s_cmp_lg_u32 {sWG}, {self.o['dbgwg']}
            s_cbranch_scc1 {L}
            s_cmp_lg_u32 {sW}, {self.o.get('dbgw',0)}
            s_cbranch_scc1 {L}
            v_readlane_b32 s92, v7, 0
            v_and_b32 v6, 1, v1
            v_cmp_eq_u32 vcc, 1, v6
            v_subrev_u32 v7, s92, v7
            v_lshrrev_b32 v6, 1, v1
            v_lshlrev_b32 v6, 2, v6
            v_cmp_gt_u32 s[88:89], 32, v1
            s_nop 1
            s_and_b64 exec, vcc, s[88:89]
            global_store_dword v6, v7, s[46:47]
            s_mov_b64 exec, -1
            {L}:''')

    def poll(self, addrs, tmp, width=1, tagoff=0, sleep=2, pre_sleep=0):
        a=self.a; L=self.lab('poll'); D=self.lab('polld')
        if pre_sleep: a(f's_sleep {pre_sleep}')
        a(f's_mov_b32 s90, 0\n{L}:')
        for i,(va,imm) in enumerate(addrs):
            r=tmp+i*width
            dst=f'v{r}' if width==1 else f'v[{r}:{r+width-1}]'
            sfx={1:'dword',2:'dwordx2',4:'dwordx4'}[width]
            a(f'global_load_{sfx} {dst}, {va}, {pWS} offset:{imm} sc1')
        a('s_add_u32 s90, s90, 1\ns_waitcnt vmcnt(0)')
        for i in range(len(addrs)):
            r=tmp+i*width+tagoff
            if i==0: a(f'v_cmp_ne_u32 vcc, {sTAG}, v{r}')
            else: a(f'v_cmp_ne_u32 s[88:89], {sTAG}, v{r}\ns_nop 0\ns_or_b64 vcc, vcc, s[88:89]')
        a(f'''s_nop 0
        s_cbranch_vccz {D}
        s_cmp_gt_u32 s90, {POLL_MAX}
        s_cbranch_scc1 {D}
        s_sleep {sleep}
        s_branch {L}
        {D}:''')
    def flag_store(self, base, idx_sgpr, vt):
        a=self.a
        a(f'''s_lshl_b32 s88, {idx_sgpr}, 7
        s_add_u32 s88, s88, {base}
        v_mov_b32 v{vt}, s88
        v_mov_b32 v{vt+1}, {sTAG}
        s_mov_b64 exec, 1
        global_store_dword v{vt}, v{vt+1}, {pWS} sc1
        s_mov_b64 exec, -1''')

    def prologue(self):
        a=self.a
        a(f'''s_cmp_ge_u32 {sWG}, 256
        s_cbranch_scc1 L_EXIT
        s_load_dwordx16 s[16:31], s[0:1], 0
        s_load_dwordx16 s[32:47], s[0:1], 64
        s_load_dwordx2 s[48:49], s[0:1], 128
        s_getpc_b64 s[4:5]
        v_and_b32 v1, 63, v0
        v_lshrrev_b32 v2, 6, v0
        v_lshlrev_b32 v3, 4, v0
        v_readfirstlane_b32 {sW}, v2
        v_lshlrev_b32 v2, 4, v1
        s_mul_i32 s6, {sWG}, 10240
        v_add_u32 v3, s6, v3
        s_lshl_b32 s7, {sW}, 10
        s_add_u32 s7, s7, {L_XT}
        s_mov_b32 m0, s7
        s_mul_i32 s51, {sWG}, 3''')
        if self.prof: a('v_mov_b32 v7, 0')
        a(f'''s_waitcnt lgkmcnt(0)
        s_load_dword {sTAG}, {pWS}, {EPOCH}''')
        a(f'''global_load_lds_dwordx4 v3, {pX}
        s_add_u32 m0, s7, 4096
        v_add_u32 v3, 4096, v3
        global_load_lds_dwordx4 v3, {pX}
        s_cmp_ge_u32 {sW}, 2
        s_cbranch_scc1 L_X2
        s_add_u32 m0, s7, 8192
        v_add_u32 v3, 4096, v3
        global_load_lds_dwordx4 v3, {pX}
        L_X2:''')
        self.stamp(0)
        a(f'''s_cmp_eq_u32 {sW}, 3
        s_cbranch_scc1 L_W3_LOADS''')
        a(f'''s_cmp_ge_u32 {sWG}, {NCONV}
        s_cbranch_scc1 L_SIDE_LOADS
        s_add_u32 s52, s51, {sW}
        s_min_u32 s52, s52, 639
        s_mul_i32 s6, s52, 384
        v_lshl_add_u32 v4, v1, 2, s6
        v_lshl_add_u32 v5, v1, 1, s6
        s_lshr_b32 s7, s52, 1
        s_lshl_b32 s7, s7, 2
        s_load_dword s53, {pLdt}, s7''')
        for i,p in enumerate([pAre,pAim,pBre,pBim,pCre,pCim]):
            a(f'global_load_dword v{8+i}, v4, {p}')
        for i,p in enumerate([pAre,pAim,pBre,pBim,pCre,pCim]):
            a(f'global_load_ushort v{14+i}, v5, {p} offset:256')
        self.code_prefetch()
        self.kgen_prep()
        a('s_waitcnt vmcnt(%d)\ns_branch L_P1' % (12+self.npf))
        a('L_SIDE_LOADS:\ns_waitcnt vmcnt(0)\ns_branch L_P1')
        a(f'''L_W3_LOADS:
        s_cmp_ge_u32 {sWG}, 240
        s_cbranch_scc1 L_SIDE_LOADS
        s_mul_i32 s57, {sWG}, 1093
        s_lshr_b32 s57, s57, 16
        s_mul_i32 s6, s57, 60
        s_sub_u32 s58, {sWG}, s6
        s_mul_i32 s6, s57, 320
        v_lshrrev_b32 v4, 3, v1
        v_mad_u32_u24 v5, v4, 40, s6''')
        for i in range(5):
            a(f'global_load_dwordx2 v[{8+2*i}:{9+2*i}], v5, {pC} offset:{8*i}')
        a(f'''s_mul_i32 s54, {sWG}, 5462
        s_lshr_b32 s54, s54, 16
        s_mul_i32 s6, s54, 12
        s_sub_u32 s55, {sWG}, s6
        s_mul_i32 s6, s54, {32*3072}
        s_lshl_b32 s7, s55, 8
        s_add_u32 s6, s6, s7
        v_lshrrev_b32 v20, 4, v1
        v_mul_u32_u24 v20, 3072, v20
        v_and_b32 v21, 15, v1
        v_lshl_add_u32 v20, v21, 4, v20
        v_add_u32 v20, s6, v20''')
        for i in range(8):
            a(f's_mov_b32 m0, {L_W1+1024*i}')
            a(f'global_load_lds_dwordx4 v20, {pW1}' if i==0 else f'v_add_u32 v20, {4*3072}, v20\nglobal_load_lds_dwordx4 v20, {pW1}')
        a(f'''s_mov_b32 s6, {20*7680}
        v_mul_lo_u32 v4, v4, s6
        v_and_b32 v5, 7, v1
        v_lshl_add_u32 v4, v5, 4, v4
        s_mul_i32 s6, s57, {160*7680}
        s_lshl_b32 s7, s58, 7
        s_add_u32 s6, s6, s7
        v_add_u32 v4, s6, v4''')
        for i in range(20):
            a(f'global_load_dwordx4 v[{96+4*i}:{99+4*i}], v4, {pWm}')
            if i<19: a('v_add_u32 v4, 7680, v4')
        a('s_waitcnt vmcnt(33)')
        a('L_P1:')
    def code_prefetch(self):
        a=self.a
        self.npf=0
        n=self.o.get('pf_lines',0)
        if not n: return
        k=(n+191)//192
        L=self.lab('nopf')
        a(f'''v_lshlrev_b32 v6, 7, v1
        s_mul_i32 s6, {sW}, {k*64*128}
        v_add_u32 v6, s6, v6''')
        for i in range(k):
            a(f'v_min_u32 v20, {(n-1)*128}, v6\nglobal_load_dword v{250+i}, v20, s[4:5]')
            if i<k-1: a('v_add_u32 v6, 8192, v6')
        self.npf=k

    def p1(self):
        a=self.a
        a(f'''v_mov_b32 v20, 0
        v_mov_b32 v21, 0
        v_mov_b32 v22, 0
        v_mov_b32 v23, 0
        v_lshlrev_b32 v24, 4, v0
        v_cmp_gt_u32 vcc, 90, v0
        v_add_u32 v24, {L_XH}, v24
        v_mov_b32 v25, {L_CNT}
        v_cndmask_b32 v24, v25, v24, vcc
        ds_write_b128 v24, v[20:23]
        v_lshrrev_b32 v4, 5, v1
        s_lshl_b32 s6, {sW}, 1
        v_add_u32 v4, s6, v4
        v_mul_u32_u24 v5, 1280, v4
        v_and_b32 v6, 31, v1
        v_lshl_add_u32 v5, v6, 3, v5
        v_add_u32 v5, {L_XT}, v5
        v_bfe_u32 v26, v1, 2, 2
        v_mul_u32_u24 v26, 1280, v26
        v_lshrrev_b32 v27, 4, v1
        v_lshl_add_u32 v26, v27, 5, v26
        v_and_b32 v27, 3, v1
        v_lshl_add_u32 v26, v27, 3, v26
        v_add_u32 v26, {L_XT}, v26
        s_waitcnt lgkmcnt(0)
        s_barrier''')
        self.stamp(1)
        for i in range(5):
            a(f'ds_read_b64 v[{28+2*i}:{29+2*i}], v5 offset:{256*i}')
        a(f'''v_lshrrev_b32 v64, 2, v1
        v_lshlrev_b32 v64, 14, v64
        v_lshl_add_u32 v64, v27, 4, v64
        s_lshl_b32 s6, {sWG}, 6
        v_add_u32 v64, s6, v64
        v_mov_b32 v38, 0
        v_mov_b32 v39, 0
        v_mov_b32 v40, 0x3f803f80''')
        a(f'''s_lshl_b32 s6, {sW}, 7
        v_add_u32 v65, s6, v26''')
        for k in range(4):
            off=k*384
            a(f'ds_read_b64_tr_b16 v[{66+4*k}:{67+4*k}], v65 offset:{off}')
            a(f'ds_read_b64_tr_b16 v[{68+4*k}:{69+4*k}], v65 offset:{off+5120}')
        a('s_waitcnt lgkmcnt(8)')
        for i in range(10):
            a(f'v_dot2c_f32_bf16 v38, v{28+i}, v40')
            a(f'v_dot2c_f32_bf16 v39, v{28+i}, v{28+i}')
        a('''s_nop 2
        v_permlane16_swap_b32 v38, v39
        v_add_f32 v38, v38, v39
        v_add_f32_dpp v38, v38, v38 quad_perm:[1,0,3,2] row_mask:0xf bank_mask:0xf
        v_add_f32_dpp v38, v38, v38 quad_perm:[2,3,0,1] row_mask:0xf bank_mask:0xf
        v_add_f32_dpp v38, v38, v38 row_half_mirror row_mask:0xf bank_mask:0xf
        v_add_f32_dpp v38, v38, v38 row_mirror row_mask:0xf bank_mask:0xf
        v_mov_b32 v39, v38
        v_permlane16_swap_b32 v38, v39
        v_mul_f32 v38, 0x3acccccd, v38
        v_mul_f32 v39, 0x3acccccd, v39
        v_fma_f32 v39, -v38, v38, v39
        v_max_f32 v39, 0, v39
        v_cvt_pk_bf16_f32 v41, v38, v39
        v_and_b32 v39, 0xffff0000, v41
        v_lshlrev_b32 v38, 16, v41
        v_add_f32 v39, 0x3727c5ac, v39
        v_cvt_pk_bf16_f32 v39, v39, v39
        v_lshlrev_b32 v39, 16, v39
        v_sqrt_f32 v39, v39
        v_cvt_pk_bf16_f32 v39, v39, v39
        v_lshlrev_b32 v39, 16, v39
        v_rcp_f32 v39, v39
        v_lshlrev_b32 v4, 2, v4
        v_mul_f32 v38, -v38, v39''')
        a(f'''ds_write2_b32 v4, v39, v38 offset0:0 offset1:8 ; placeholder'''.replace('ds_write2_b32 v4, v39, v38 offset0:0 offset1:8 ; placeholder', f'v_add_u32 v4, {L_ST}, v4\nds_write2_b32 v4, v39, v38 offset0:0 offset1:8'))
        a(f'''s_waitcnt lgkmcnt(0)
        s_add_u32 {sTAG}, {sTAG}, 1
        s_barrier''')
        self.stamp(2)
        a(f'''s_cmp_eq_u32 {sW}, 3
        s_cbranch_scc1 L_W3_P1
        v_mov_b32 v4, {L_ST}
        ds_read_b128 v[44:47], v4
        ds_read_b128 v[48:51], v4 offset:16
        ds_read_b128 v[52:55], v4 offset:32
        ds_read_b128 v[56:59], v4 offset:48
        s_mul_i32 s6, {sW}, 262144
        s_add_u32 s6, s6, {XH}
        v_add_u32 v65, s6, v64
        s_waitcnt lgkmcnt(0)''')
        for k in range(4):
            if k==3: a(f's_cmp_lg_u32 {sW}, 0\ns_cbranch_scc1 L_XH_3')
            for p in range(4):
                r=66+4*k+p
                a(f'''v_and_b32 v{85+2*(p&1)}, 0xffff0000, v{r}
                v_lshlrev_b32 v{84+2*(p&1)}, 16, v{r}
                v_pk_fma_f32 v[{84+2*(p&1)}:{85+2*(p&1)}], v[{84+2*(p&1)}:{85+2*(p&1)}], v[{44+2*p}:{45+2*p}], v[{52+2*p}:{53+2*p}]
                v_cvt_pk_bf16_f32 v{r}, v{84+2*(p&1)}, v{85+2*(p&1)}''')
            a(f'global_store_dwordx4 v65, v[{66+4*k}:{69+4*k}], {pWS} sc1')
            if k<3: a(f'v_add_u32 v65, {3*262144}, v65')
        a('s_waitcnt vmcnt(4)\ns_branch L_XH_DONE\nL_XH_3:\ns_waitcnt vmcnt(3)\nL_XH_DONE:')
        self.stamp(3)

    def signal_lds(self, cnt, n, base, idx, vt):
        a=self.a; L=self.lab('sig')
        a(f'''v_mov_b32 v{vt}, {L_CNT+4*cnt}
        v_mov_b32 v{vt+1}, 1
        s_mov_b64 exec, 1
        ds_add_rtn_u32 v{vt}, v{vt}, v{vt+1}
        s_mov_b64 exec, -1
        s_waitcnt lgkmcnt(0)
        v_readfirstlane_b32 s88, v{vt}
        s_cmp_lg_u32 s88, {n-1}
        s_cbranch_scc1 {L}''')
        self.flag_store(base, idx, vt)
        a(f'{L}:')

    def cmul(self, d, x, y):
        return [f'v_pk_mul_f32 v[{d}:{d+1}], v[{x}:{x+1}], v[{y}:{y+1}] op_sel_hi:[0,1]',
                f'v_pk_fma_f32 v[{d}:{d+1}], v[{x}:{x+1}], v[{y}:{y+1}], v[{d}:{d+1}] op_sel:[1,1,0] op_sel_hi:[1,0,1] neg_lo:[1,0,0]']
    def kgen(self):
        a=self.a
        ROW=272; YB=0; XB=YB+32*ROW
        vWA=4
        vRA=5
        a(f'''s_cmp_ge_u32 {sWG}, {NCONV}
        s_cbranch_scc1 L_SIDE_W2
        s_mul_i32 s59, {sW}, {KSA}
        s_mov_b32 m0, s59
        v_and_b32 v20, 31, v1
        v_mul_u32_u24 v20, {ROW}, v20
        v_lshrrev_b32 v21, 5, v1
        v_lshl_add_u32 v20, v21, 4, v20
        v_add_u32 v{vRA}, s59, v20
        s_bitcmp1_b32 s52, 0
        s_cselect_b32 s6, 0, 16
        s_lshl_b32 s6, s53, s6
        s_and_b32 s6, s6, 0xffff0000
        v_mov_b32 v20, {hex(LOG2E)}
        v_mul_f32 v20, s6, v20
        v_exp_f32 v20, v20
        v_mov_b32 v21, 0x3f80
        v_cvt_pk_bf16_f32 v20, v20, v20
        ds_write_addtid_b32 v21 offset:{YB}
        v_lshlrev_b32 v6, 16, v20''')
        vDT=6
        EA=20; BR=21; W=22; T=24
        Y=32
        Z1=64; Z2=66; Z4=68; P256=70; P512=72; P1024=74
        X=76
        CV=118
        TM=126
        ACC=136
        OP=152
        cvn=[0]
        def emit_val(reg,row,isx):
            c=CV+(cvn[0]%8); cvn[0]+=1
            neg='-' if isx else ''
            return [f'v_cvt_pk_bf16_f32 v{c}, v{reg}, {neg}v{reg+1}', f'ds_write_addtid_b32 v{c} offset:{(XB if isx else YB)+row*ROW}']
        def direct(dst,e,t):
            import struct
            fe=hex(struct.unpack('<I',struct.pack('<f',float(e)))[0])
            m = (lambda d,s: f'v_mov_b32 v{d}, v{s}') if e==1 else (lambda d,s: f'v_mul_f32 v{d}, {fe}, v{s}')
            return [m(t,EA), m(t+1,BR), f'v_exp_f32 v{t}, v{t}', f'v_fract_f32 v{t+1}, v{t+1}',
                    f'v_cos_f32 v{dst}, v{t+1}', f'v_sin_f32 v{dst+1}, v{t+1}',
                    f'v_pk_mul_f32 v[{dst}:{dst+1}], v[{dst}:{dst+1}], v[{t}:{t+1}] op_sel_hi:[1,0]']
        def ilv(*seqs):
            out=[]; n=max(len(s) for s in seqs)
            for i in range(n):
                for s in seqs:
                    if i<len(s): out.append(s[i])
            return out
        yr=lambda j: Y+2*(j-1)
        xr=lambda i: X+2*i
        pend_mfma=[]
        for ch in range(3):
            S=[]; cvn[0]=0
            src=[8+i for i in range(6)] if ch<2 else [14+i for i in range(6)]
            up=(lambda d,s: f'v_and_b32 v{d}, 0xffff0000, v{s}') if ch==1 else (lambda d,s: f'v_lshlrev_b32 v{d}, 16, v{s}')
            S+= [up(EA,src[0]), up(BR,src[1]), up(T,src[2]), up(T+1,src[3]), up(T+2,src[4]), up(T+3,src[5])]
            S+= [f'v_pk_mul_f32 v[{EA}:{BR}], v[{EA}:{BR}], v[{vDT}:{vDT+1}] op_sel_hi:[1,0]',
                 f'v_pk_mul_f32 v[{T}:{T+1}], v[{T}:{T+1}], v[{vDT}:{vDT+1}] op_sel_hi:[1,0]',
                 f'v_mul_f32 v{EA}, {hex(LOG2E)}, v{EA}', f'v_mul_f32 v{BR}, {hex(INV2PI)}, v{BR}']
            S+= self.cmul(xr(0),T+2,T)
            S+= ilv(direct(yr(8),64,TM+2), direct(Z1,1,TM+4))
            S+= ilv(self.cmul(yr(16),yr(8),yr(8)), self.cmul(Z2,Z1,Z1))
            S+= ilv(self.cmul(P256,yr(16),yr(16)), self.cmul(Z4,Z2,Z2))
            S+= ilv(self.cmul(P512,P256,P256), self.cmul(yr(1),Z4,Z4))
            S+= ilv(self.cmul(P1024,P512,P512), self.cmul(yr(2),yr(1),yr(1)))
            S+= ilv(self.cmul(yr(4),yr(2),yr(2)), self.cmul(yr(3),yr(2),yr(1)))
            head=S; S=[]
            E=[]
            for j in (1,2,8,16,4,3): E+=emit_val(yr(j),j,False)
            M=[(yr(5),yr(4),yr(1)),(yr(6),yr(4),yr(2)),(yr(7),yr(4),yr(3))]
            M+=[(xr(1),xr(0),Z1),(xr(2),xr(0),Z2),(xr(4),xr(0),Z4)]
            M+=[(yr(8+k),yr(8),yr(k)) for k in range(1,8)]
            M+=[(xr(3),xr(1),Z2),(xr(5),xr(1),Z4),(xr(6),xr(2),Z4),(xr(8),xr(0),P256),(xr(12),xr(0),P512),(xr(16),xr(0),P1024)]
            M+=[(xr(7),xr(3),Z4),(xr(9),xr(2),P256),(xr(10),xr(4),P256),(xr(11),xr(6),P256),(xr(13),xr(4),P512),(xr(14),xr(8),P512)]
            M+=[(xr(15),xr(10),P512),(xr(17),xr(8),P1024),(xr(18),xr(12),P1024),(xr(19),xr(14),P1024),(xr(20),xr(16),P1024)]
            rowof={}
            for j in range(1,17): rowof[yr(j)]=(j,False)
            for i in range(21): rowof[xr(i)]=(i,True)
            E+=emit_val(xr(0),0,True)
            body=[]; wq=[]; pm=list(pend_mfma)
            def flush():
                if pm: body.append(pm.pop(0))
                body.extend(wq[:5])
                if len(pm)==7-0 and False: pass
                body.extend(wq[5:]); wq.clear()
            def put(pair):
                body.append(pair[0]); wq.append(pair[1])
                if len(wq)==8: flush()
            for i in range(0,len(E),2): put(E[i:i+2])
            allM=[(d,x,y,rowof[d]) for d,x,y in M]+[(TM+2*(k%4),yr(16),yr(k+1),(17+k,False)) for k in range(15)]
            for i in range(0,len(allM),2):
                grp=allM[i:i+2]
                body+=ilv(*[self.cmul(d,x,y) for d,x,y,_ in grp])
                for d,x,y,(row,isx) in grp: put(emit_val(d,row,isx))
            flush()
            body.extend(pm)
            if pend_mfma: head.append('s_waitcnt lgkmcnt(0)')
            for x in head+body: a(x)
            self.stamp2(6+ch)
            if ch==0:
                a('s_waitcnt vmcnt(0)')
                self.signal_lds(0,3,F1,sWG,T)
                self.stamp(4)
            a('s_waitcnt lgkmcnt(0)')
            for s in range(8):
                a(f'ds_read_b128 v[{OP+8*s}:{OP+8*s+3}], v{vRA} offset:{XB+32*s}')
                a(f'ds_read_b128 v[{OP+8*s+4}:{OP+8*s+7}], v{vRA} offset:{YB+32*s}')
            pend_mfma=[f'v_mfma_f32_32x32x16_bf16 v[{ACC}:{ACC+15}], v[{OP+8*s}:{OP+8*s+3}], v[{OP+8*s+4}:{OP+8*s+7}], {"0" if (ch==0 and s==0) else f"v[{ACC}:{ACC+15}]"}' for s in range(8)]
        for s in range(8):
            a(f's_waitcnt lgkmcnt({min(15,14-2*s)})' if s<7 else 's_waitcnt lgkmcnt(0)')
            a(pend_mfma[s])
        self.stamp2(9)
        for r in range(12): a(f'v_cvt_pk_bf16_f32 v{ACC+r}, v{ACC+r}, v{ACC+r}')
        a(f'''ds_write_b128 v216, v[{ACC}:{ACC+3}]
        s_mov_b32 exec_hi, 0
        ds_write_b128 v217, v[{ACC+4}:{ACC+7}] offset:1024
        ds_write_b32 v219, v{ACC+8} offset:2048
        ds_write_b32 v219, v{ACC+9} offset:{2048+128}
        ds_write_b32 v219, v{ACC+10} offset:{2048+256}
        ds_write_b32 v219, v{ACC+11} offset:{2048+384}
        s_not_b64 exec, exec
        ds_write_b64 v218, v[{ACC+4}:{ACC+5}] offset:1536
        ds_write_b64 v218, v[{ACC+6}:{ACC+7}] offset:{1536+256}
        ds_write_b32 v219, v{ACC+8} offset:2560
        s_mov_b64 exec, -1
        v_mov_b32 v20, 0
        s_waitcnt lgkmcnt(0)
        ds_write_b32 v233, v20''')
        GV={}; r=32
        for g in range(16):
            GV[g]=r; r+= 4 if g<4 else 2
        for g in range(16):
            v=GV[g]
            if g<2:
                a(f'ds_read2_b32 v[{v}:{v+1}], v220 offset0:{128*g} offset1:{128*g+1}')
                a(f'ds_read_b32 v{v+2}, v220 offset:{512*g+8}')
            elif g<4:
                for k in range(3): a(f'ds_read_b32 v{v+k}, v{221+3*(g-2)+k}')
            elif g<8: a(f'ds_read2_b32 v[{v}:{v+1}], v227 offset0:{32*(g-4)} offset1:{32*(g-4)+1}')
            else: a(f'ds_read2_b32 v[{v}:{v+1}], v230 offset0:{16*(g-8)} offset1:{16*(g-8)+1}')
        self.stamp2(10)
        EO=80
        def perms(g):
            v=GV[g]; e=EO+2*g
            if g<4:
                a(f'v_perm_b32 v{e}, v{v+1}, v{v+2}, s60')
                a(f'v_perm_b32 v{e+1}, v{v}, v{v+1}, s60')
            else:
                sel=228 if g<8 else 231
                a(f'v_perm_b32 v{e}, v{v+1}, v{v}, v{sel}')
                a(f'v_perm_b32 v{e+1}, v{v+1}, v{v}, v{sel+1}')
        def writes(gs):
            for grp in range(2):
                a(f's_add_u32 m0, s59, {0 if grp==0 else KMB}')
                for g in gs:
                    for sig in range(8):
                        if (sig>>1)&1!=grp: continue
                        off=kbase(sig,0)-(KMB if grp else 0)+4*(957+(sig>>1)-64*g)
                        a(f'ds_write_addtid_b32 v{EO+2*g+(0 if sig&1 else 1)} offset:{off}')
        a('s_mov_b32 s60, 0x05040100\ns_waitcnt lgkmcnt(8)')
        for g in range(8): perms(g)
        a('s_waitcnt lgkmcnt(0)')
        for g in range(8,16): perms(g)
        writes(range(8))
        self.stamp2(11)
        writes(range(8,16))
        self.stamp(5)

    def kgen_prep(self):
        a=self.a
        a(f'''s_mul_i32 s6, {sW}, {TTS}
        s_add_u32 s6, s6, {L_TT+16}
        v_and_b32 v20, 31, v1
        v_lshrrev_b32 v21, 5, v1
        v_lshlrev_b32 v216, 5, v20
        v_lshl_add_u32 v216, v21, 4, v216
        v_add_u32 v216, s6, v216
        v_lshl_add_u32 v217, v20, 4, s6
        v_lshl_add_u32 v218, v20, 3, s6
        v_lshl_add_u32 v219, v20, 2, s6
        v_lshlrev_b32 v20, 1, v1
        v_sub_u32 v20, 125, v20
        v_lshl_add_u32 v220, v20, 2, s6
        s_sub_u32 s7, s6, 4
        v_mov_b32 v22, s7
        v_mov_b32 v23, 0
        ds_write_b32 v22, v23
        s_add_u32 s7, s6, {4*(128-0x4300)&0xffffffff}''')
        def idx(dst,tap0):
            a(f'''v_add_u32 v{dst}, {tap0}, v20
            v_cvt_f32_u32 v{dst}, v{dst}
            v_cvt_pk_bf16_f32 v{dst}, v{dst}, 0''')
        for g in (2,3):
            for k in range(3):
                d=221+3*(g-2)+k
                idx(d,128*g+k); a(f'v_lshl_add_u32 v{d}, v{d}, 2, s7')
        for g,d in ((4,227),(8,230)):
            idx(d,128*g); idx(d+1,128*g+2); idx(d+2,128*g+1)
            a(f'''v_sub_u32 v{d+1}, v{d+1}, v{d}
            v_sub_u32 v{d+2}, v{d+2}, v{d}
            v_lshl_add_u32 v{d}, v{d}, 2, s7
            v_mul_u32_u24 v{d+1}, 0x0404, v{d+1}
            v_mul_u32_u24 v{d+2}, 0x0404, v{d+2}
            v_lshl_add_u32 v{d+1}, v{d+2}, 16, v{d+1}
            v_add_u32 v{d+1}, 0x01000100, v{d+1}
            v_add_u32 v{d+2}, 0x01000100, v{d+2}''')
        a(f'''v_lshrrev_b32 v21, 3, v1
        v_and_b32 v22, 1, v21
        v_lshrrev_b32 v23, 2, v21
        v_lshl_add_u32 v22, v22, 1, v23
        v_mul_u32_u24 v22, 4128, v22
        v_bfe_u32 v23, v21, 1, 1
        v_mul_u32_u24 v23, {KRB}, v23
        v_add_u32 v22, v22, v23
        v_lshrrev_b32 v21, 1, v21
        v_and_b32 v23, 7, v1
        v_min_u32 v23, 6, v23
        v_add_u32 v21, v21, v23
        v_lshl_add_u32 v22, v21, 2, v22
        s_mul_i32 s6, {sW}, {KSA}
        s_add_u32 s6, s6, {16+4*1021}
        v_add_u32 v233, s6, v22''')

    def relayout_tiles(self, vtr, ntiles, ldsoff, rowbytes, dstregs, addr_fn):
        a=self.a
        for t in range(ntiles):
            r=dstregs+4*t
            a(f'ds_read_b64_tr_b16 v[{r}:{r+1}], v{vtr} offset:{ldsoff+32*t}')
            a(f'ds_read_b64_tr_b16 v[{r+2}:{r+3}], v{vtr} offset:{ldsoff+32*t+16*rowbytes}')
        for t in range(ntiles):
            r=dstregs+4*t
            addr_fn(t)
            a(f's_waitcnt lgkmcnt({min(15,2*(ntiles-1-t))})')
            a(f'global_store_dwordx4 v2, v[{r}:{r+3}], s[6:7] sc1')

    def w3_p1(self):
        a=self.a
        a('L_W3_P1:')
        a(f'v_add_u32 v65, {XT}, v64')
        for half in range(2):
            for k in range(5):
                u=5*half+k
                a(f'ds_read_b64_tr_b16 v[{28+4*k}:{29+4*k}], v26 offset:{128*u}')
                a(f'ds_read_b64_tr_b16 v[{30+4*k}:{31+4*k}], v26 offset:{128*u+5120}')
            for k in range(5):
                a(f's_waitcnt lgkmcnt({8-2*k})')
                a(f'global_store_dwordx4 v65, v[{28+4*k}:{31+4*k}], {pWS} sc1')
                a(f'v_add_u32 v65, 262144, v65')
        a(f'''s_cmp_ge_u32 {sWG}, 240
        s_cbranch_scc1 L_W3_NOMOD
        s_waitcnt vmcnt(38)''')
        for i in range(0,20,2):
            s=8+i//2; d=176+i
            a(f'''v_lshlrev_b32 v{d}, 16, v{s}
            v_and_b32 v{d+1}, 0xffff0000, v{s}
            v_mul_f32 v48, 0xbfb8aa3b, v{d}
            v_mul_f32 v49, 0xbfb8aa3b, v{d+1}
            v_exp_f32 v48, v48
            v_exp_f32 v49, v49
            v_add_f32 v48, 1.0, v48
            v_add_f32 v49, 1.0, v49
            v_rcp_f32 v48, v48
            v_rcp_f32 v49, v49
            v_mul_f32 v48, v48, v{d}
            v_mul_f32 v49, v49, v{d+1}
            v_cvt_pk_bf16_f32 v48, v48, v49
            v_lshlrev_b32 v{d}, 16, v48
            v_and_b32 v{d+1}, 0xffff0000, v48''')
        a(f'''v_lshrrev_b32 v4, 2, v1
        v_lshlrev_b32 v4, 8, v4
        v_and_b32 v5, 3, v1
        v_lshl_add_u32 v4, v5, 3, v4
        v_add_u32 v4, {L_W1}, v4
        s_lshl_b32 s55, s55, 3
        s_mul_i32 s54, s54, 3072
        s_add_u32 s54, s54, {W1P}
        s_waitcnt vmcnt(30)''')
        def addr1(t):
            a(f'''s_add_u32 s8, s55, {t}
            s_mul_i32 s9, s8, 21846
            s_lshr_b32 s9, s9, 16
            s_mul_i32 s10, s9, {20*3072-3*1024}
            s_lshl_b32 s8, s8, 10
            s_add_u32 s8, s8, s10
            s_add_u32 s8, s8, s54
            s_add_u32 s6, s48, s8
            s_addc_u32 s7, s49, 0''')
        self.relayout_tiles(4,8,0,256,28,addr1)
        for j in range(8): a(f'v_mov_b32 v{196+j}, 0')
        for i in range(20):
            a(f's_waitcnt vmcnt({37-i})')
            for p in range(4):
                r=96+4*i+p
                a(f'''v_lshlrev_b32 v{60+2*(p&1)}, 16, v{r}
                v_and_b32 v{61+2*(p&1)}, 0xffff0000, v{r}
                v_pk_fma_f32 v[{196+2*p}:{197+2*p}], v[{60+2*(p&1)}:{61+2*(p&1)}], v[{176+(i&~1)}:{177+(i&~1)}], v[{196+2*p}:{197+2*p}] op_sel:[0,{i&1},0] op_sel_hi:[1,{i&1},1]''')
        for j in range(4): a(f'v_permlane32_swap_b32 v{196+j}, v{200+j}')
        for j in range(4): a(f'v_add_f32 v{196+j}, v{196+j}, v{200+j}')
        for j in range(2): a(f'v_permlane16_swap_b32 v{196+j}, v{198+j}')
        for j in range(2): a(f'v_add_f32 v{196+j}, v{196+j}, v{198+j}')
        a(f'''v_add_f32_dpp v196, v196, v196 row_ror:8 row_mask:0xf bank_mask:0xf
        v_add_f32_dpp v197, v197, v197 row_ror:8 row_mask:0xf bank_mask:0xf
        v_bfe_u32 v4, v1, 3, 1
        v_cmp_eq_u32 vcc, 1, v4
        v_bfe_u32 v5, v1, 4, 1
        v_lshl_add_u32 v4, v5, 1, v4
        v_cndmask_b32 v196, v196, v197, vcc
        v_lshrrev_b32 v5, 5, v1
        v_lshl_add_u32 v4, v5, 2, v4
        v_and_b32 v5, 7, v1
        v_lshl_add_u32 v4, v5, 3, v4
        s_mul_i32 s6, s57, {3840*8}
        s_lshl_b32 s7, s58, 9
        s_add_u32 s6, s6, s7
        s_add_u32 s6, s6, {MODP}
        v_lshl_add_u32 v4, v4, 3, s6
        v_mov_b32 v197, {sTAG}
        global_store_dwordx2 v4, v[196:197], {pWS} sc1
        L_W3_NOMOD:
        s_waitcnt vmcnt(0)''')
        self.flag_store(F1B,sWG,4)
        self.stamp(4)

    def side_w2(self):
        a=self.a
        a(f'''L_SIDE_W2:
        s_waitcnt vmcnt(0)''')
        self.signal_lds(0,3,F1,sWG,24)
        a(f'''s_sub_u32 s52, {sWG}, {NCONV}
        s_mul_i32 s52, s52, 3
        s_add_u32 s52, s52, {sW}
        s_lshl_b32 s56, {sW}, 14
        v_lshrrev_b32 v20, 3, v1
        v_mul_u32_u24 v20, 1280, v20
        v_and_b32 v21, 7, v1
        v_lshl_add_u32 v20, v21, 4, v20
        v_lshrrev_b32 v4, 2, v1
        v_lshlrev_b32 v4, 7, v4
        v_and_b32 v5, 3, v1
        v_lshl_add_u32 v4, v5, 3, v4
        v_add_u32 v4, s56, v4''')
        for r in range(4):
            a(f'''s_add_u32 s8, s52, {126*r}
            s_min_u32 s8, s8, 479
            s_mul_i32 s9, s8, 6554
            s_lshr_b32 s{60+2*r}, s9, 16
            s_mul_i32 s9, s{60+2*r}, 10
            s_sub_u32 s{61+2*r}, s8, s9
            s_mul_i32 s8, s{60+2*r}, {32*1280}
            s_lshl_b32 s9, s{61+2*r}, 7
            s_add_u32 s8, s8, s9
            v_add_u32 v21, s8, v20''')
            for i in range(4):
                a(f's_add_u32 m0, s56, {4096*r+1024*i}')
                a(f'global_load_lds_dwordx4 v21, {pW2}' if i==0 else f'v_add_u32 v21, {8*1280}, v21\nglobal_load_lds_dwordx4 v21, {pW2}')
        for r in range(4):
            a(f's_waitcnt vmcnt({12-4*r+4*r})'.replace(f'({12})','(12)'))
            def addr2(t,r=r):
                a(f'''s_lshl_b32 s8, s{61+2*r}, 2
                s_add_u32 s8, s8, {t}
                s_mul_i32 s9, s8, 13108
                s_lshr_b32 s9, s9, 16
                s_mul_i32 s10, s9, 5
                s_sub_u32 s8, s8, s10
                s_mul_i32 s10, s{60+2*r}, 5462
                s_lshr_b32 s10, s10, 16
                s_sub_u32 s10, s8, s10
                s_and_b32 s10, s10, 3
                s_cmp_eq_u32 s8, 4
                s_cselect_b32 s8, 4, s10
                s_mul_i32 s9, s9, 240
                s_add_u32 s8, s8, s9
                s_mul_i32 s10, s{60+2*r}, 5
                s_add_u32 s8, s8, s10
                s_lshl_b32 s8, s8, 10
                s_add_u32 s8, s8, {W2P}
                s_add_u32 s6, s48, s8
                s_addc_u32 s7, s49, 0''')
            self.relayout_tiles(4,4,4096*r,128,28+16*(r&1),addr2)
        a('s_waitcnt vmcnt(0)')
        self.signal_lds(1,3,FW2,sWG,24)

    def finish(self):
        a=self.a
        a('L_FIN:')
        self.stamp(31)
        self.stamp_flush()
        a('L_EXIT:\ns_endpgm')

    def build(self):
        from phases2 import rest
        a=self.a
        self.prologue(); self.p1(); self.kgen()
        rest(self)
        self.finish()
        n=a.fix()
        e=sum(a.check_waits(env={'s2':wg,'s3':w}) for wg in (0,213,214,240) for w in range(4))
        al=a.align()
        hdr=open(os.path.join(os.path.dirname(os.path.abspath(__file__)),'header.txt')).read()
        s=hdr+f'; @launch grid=(256,1,1) block=(256,1,1) lds={LDS_BYTES}\n'
        s+=f'.amdgcn_target "amdgcn-amd-amdhsa--gfx950"\n.text\n.globl {KNAME}\n.p2align 8\n.type {KNAME},@function\n{KNAME}:\n'
        s+=a.text()
        s+=f'''.section .rodata,"a"
.p2align 6
.amdhsa_kernel {KNAME}
  .amdhsa_next_free_vgpr 512
  .amdhsa_next_free_sgpr 102
  .amdhsa_accum_offset 256
  .amdhsa_group_segment_fixed_size 0
  .amdhsa_kernarg_size 136
  .amdhsa_user_sgpr_count 2
  .amdhsa_user_sgpr_kernarg_segment_ptr 1
  .amdhsa_system_sgpr_workgroup_id_x 1
.end_amdhsa_kernel
'''
        print(f'[gen] {len(a.L)} lines, {n} hazard nops, {e} wait errors, align {al}', file=sys.stderr)
        return s

if __name__=='__main__':
    import argparse
    ap=argparse.ArgumentParser(); ap.add_argument('-o',default='out.s'); ap.add_argument('--stop'); ap.add_argument('--prof',action='store_true'); ap.add_argument('--opt',action='append',default=[])
    x=ap.parse_args()
    opts={k:int(v,0) for k,v in (o.split('=') for o in x.opt)}
    open(x.o,'w').write(G(x.stop,x.prof,opts).build())
```

```python
EPOCH=0x0
F1=0x01000; FW1=0x09000; F2E=0x11000; F2L=0x19000; F3E=0x21000; F3L=0x29000; FW2=0x31000
FUV=0x39000
UV=0x3A000
STG=0x41000
PROF=0x90000
MODP=0xD0000
import os
QS=int(os.environ.get('QS',16384+128))
XH=0x2400000; XT=0x2800000
W1P=0x600000; W2P=0x800000
X1=0xA00000; X1S=0xC80000
HB=0x1000000
DUMMY_SHIFT=0xC00000
DBG=0x2000000
NCONV=214
KSA=16528; KRB=49792; KMB=17024
def kbase(sig,w): return ((sig>>1)&1)*KRB + KSA*w + 16 + 4128*(2*(sig&1)+(sig>>2))
TTS=2720
L_KC=0
L_XH=99936
L_XT=L_XH+13728
L_TT=L_XT+12288
L_ST=L_TT+3*TTS
L_CNT=L_ST+64
L_MOD=L_CNT+64
L_END=L_MOD+192
L_C2=L_XH; L_SB=L_C2+1280
L_XS0=0; L_XS1=40960; L_XP0=81920; L_XP1=87040; L_RED=92160
LDS_BYTES=L_END
assert LDS_BYTES<=163840 and L_RED+32768<=L_ST
```

```python
from layout import *
from gen import *

NA=32

class VM:
    def __init__(s,a): s.a=a; s.q=[]
    def op(s,text,tag): s.a(text); s.q.append(tag)
    def wait(s,*tags):
        if not any(t in tags for t in s.q): return
        idx=max(i for i,t in enumerate(s.q) if t in tags)
        n=len(s.q)-1-idx
        assert n<=63,n
        s.a(f's_waitcnt vmcnt({n})'); s.q=s.q[idx+1:]
    def clear(s): s.q=[]

def dump_lds(g, ldsbase_sgpr, nbytes, dst_sgpr):
    a=g.a
    a(f'''s_waitcnt lgkmcnt(0)
    v_add_u32 v20, {ldsbase_sgpr}, v2
    v_add_u32 v21, {dst_sgpr}, v2''')
    for o in range(0,nbytes,1024):
        a(f'''ds_read_b128 v[24:27], v20 offset:{o}
        s_waitcnt lgkmcnt(0)
        global_store_dwordx4 v21, v[24:27], {pWS}
        v_add_u32 v21, 1024, v21
        s_nop 1''')

def gemm_ids(g):
    a=g.a
    a(f'''s_and_b32 s61, {sWG}, 7
    s_lshl_b32 s61, s61, 2
    s_lshr_b32 s6, {sWG}, 6
    s_add_u32 s61, s61, s6
    s_lshr_b32 s62, {sWG}, 3
    s_add_u32 s62, s62, {sWG}
    s_and_b32 s62, s62, 7
    s_lshl_b32 s63, s61, 3
    s_add_u32 s63, s63, s62
    s_lshl_b32 s6, s62, 2
    s_add_u32 s6, s6, {sW}
    s_mul_i32 s6, s6, 61440
    s_add_u32 s7, s6, {W1P+4096}
    s_add_u32 s64, s48, s7
    s_addc_u32 s65, s49, 0
    s_add_u32 s7, s6, {W2P+4096}
    s_add_u32 s66, s48, s7
    s_addc_u32 s67, s49, 0''')

def wload(vm, which, i, dst):
    a=vm.a; b=64+2*which
    L=[]
    if i and i%8==0: L.append(f's_add_u32 s{b}, s{b}, 8192\ns_addc_u32 s{b+1}, s{b+1}, 0')
    L.append((f'global_load_dwordx4 {dst}, v2, s[{b}:{b+1}] offset:{(i%8)*1024-4096} sc1', 'w%d_%d'%(which,i)))
    return L
def emit(vm, items):
    for x in items:
        if isinstance(x,tuple): vm.op(*x)
        elif callable(x): x()
        else: vm.a(x)

def mfma_stream(vm, seq, pool, look, extras, acc_first):
    a=vm.a
    order=[]; last={}
    for n,(acc,A,B) in enumerate(seq):
        for k in (A,B):
            if k not in last: order.append(k)
            last[k]=n
    slot={}; free=list(pool); issued=0; done=-1
    pos={k:i for i,k in enumerate(order)}
    started=set()
    def issue():
        nonlocal issued
        k=order[issued]; r=free.pop(0); slot[k]=r
        a(f'ds_read_b128 v[{r}:{r+3}], v{k[0]} offset:{k[1]}'); issued+=1
    for n,(acc,A,B) in enumerate(seq):
        need=max(pos[A],pos[B])
        while issued<=need: issue()
        if n==0:
            while issued<min(len(order),look+1) and free: issue()
        if need>done:
            out=issued-1-need
            a(f's_waitcnt lgkmcnt({min(out,15)})'); done=need if out<=15 else issued-16
            assert done>=need or out<=15
        c = f'v[{acc}:{acc+3}]' if acc in started else '0'
        started.add(acc)
        a(f'v_mfma_f32_16x16x32_bf16 v[{acc}:{acc+3}], v[{slot[A]}:{slot[A]+3}], v[{slot[B]}:{slot[B]+3}], {c}')
        for k in (A,B):
            if last[k]==n and slot[k] is not None:
                free.append(slot[k]); slot[k]=None
        nxt = max(pos[seq[n+1][1]],pos[seq[n+1][2]]) if n+1<len(seq) else len(order)
        c=0
        while issued<len(order) and issued<=nxt+look and free and c<2 and issued-done<=15: issue(); c+=1
        if n in extras:
            emit(vm, extras[n])

def spread(items, lo, hi, extras):
    n=len(items)
    for i,x in enumerate(items):
        extras.setdefault(lo+(hi-lo)*i//max(1,n),[]).extend(x if isinstance(x,list) else [x])

ACC=16; POOL=[32+4*i for i in range(20)]
def conv_setup(g, w3):
    a=g.a
    a(f'''v_and_b32 v20, 7, v1
    v_and_b32 v21, 1, v20
    v_lshrrev_b32 v22, 2, v20
    v_lshl_add_u32 v21, v21, 1, v22
    v_mul_u32_u24 v21, 4128, v21
    v_bfe_u32 v22, v20, 1, 1
    v_mul_u32_u24 v22, {KRB}, v22
    v_add_u32 v21, v21, v22
    v_lshrrev_b32 v22, 4, v1
    v_bfe_u32 v23, v1, 3, 1
    v_sub_u32 v23, v22, v23
    v_lshl_add_u32 v21, v23, 4, v21
    v_and_b32 v23, 15, v1
    v_lshl_add_u32 v24, v23, 1, v22
    v_mul_u32_u24 v24, 48, v24
    v_lshrrev_b32 v25, 1, v22
    v_lshl_add_u32 v26, v23, 1, v25
    v_mul_u32_u24 v26, 48, v26
    v_and_b32 v27, 1, v22
    v_lshl_add_u32 v26, v27, 3, v26
    v_lshrrev_b32 v28, 1, v23
    v_mul_u32_u24 v28, 40960, v28
    v_lshl_add_u32 v28, v25, 4, v28
    v_mul_u32_u24 v27, {X1S-X1}, v27
    v_add_u32 v28, v28, v27
    v_and_b32 v23, 1, v23
    v_lshl_add_u32 v28, v23, 5, v28''')
    def chan(dst, chs):
        a(f'''s_add_u32 s6, s51, {chs}
        s_lshl_b32 s7, s6, 6
        s_add_u32 s8, s7, {DUMMY_SHIFT}
        s_cmp_ge_u32 s6, 640
        s_cselect_b32 s7, s8, s7
        s_add_u32 s7, s7, {X1}
        s_lshl_b32 s6, s6, 3
        s_and_b32 s6, s6, 32
        v_xor_b32 v{dst}, s6, v28
        v_add_u32 v{dst}, s7, v{dst}''')
    if w3:
        a(f'''v_add_u32 v234, {32}, v21
        v_add_u32 v235, {32+KSA}, v21
        v_add_u32 v236, {32+2*KSA}, v21
        v_add_u32 v237, {L_XH}, v24
        v_add_u32 v238, {L_XH+1440}, v26''')
        for k in range(3): chan(239+k,k)
    else:
        a(f'''s_mul_i32 s6, {sW}, {KSA}
        s_add_u32 s6, s6, 32
        v_add_u32 v234, s6, v21
        s_lshl_b32 s6, {sW}, 4
        s_add_u32 s7, s6, {L_XH}
        v_add_u32 v237, s7, v24
        s_add_u32 s7, s6, {L_XH+1440}
        v_add_u32 v238, s7, v26''')
        chan(239,sW)

    a(f'''v_lshlrev_b32 v242, 4, v0
    v_add_u32 v242, {L_XH+1440}, v242
    v_mul_u32_u24 v21, 0x5556, v0
    v_lshrrev_b32 v21, 16, v21
    v_mul_u32_u24 v21, 3, v21
    v_sub_u32 v21, v0, v21
    v_lshlrev_b32 v21, 2, v21
    v_add_u32 v243, {L_MOD}, v21
    v_min_u32 v244, {255-NCONV}, v1
    v_lshlrev_b32 v244, 7, v244
    v_add_u32 v244, {FW1+128*NCONV}, v244
    v_min_u32 v245, {NCONV-1}, v0
    v_lshlrev_b32 v245, 7, v245
    v_add_u32 v245, {F2E}, v245''')

def conv_seq(w3, stage):
    seq=[]
    for rho in range(8):
        kA=lambda ch,m: (234+ch, 4032-64*rho-512*m)
        kB=lambda ch,d: (237, 1344-192*rho+1536*d+16*ch)
        if w3:
            c=4*stage
            for m in range(c+1):
                for ch in range(3): seq.append((ACC+4*ch,kA(ch,m),kB(ch,c-m)))
        else:
            for m in range(4*stage+4):
                for k in (2,1,0):
                    c=4*stage+1+k
                    if c>=m: seq.append((ACC+4*k,kA(0,m),kB(0,c-m)))
    return seq

def conv_epilogue(g, vm, w3, stage):
    a=g.a
    R=32
    for k in range(3):
        c = 4*stage if w3 else 4*stage+1+k
        off = 1536*c + (16*k if w3 else 0)
        a(f'ds_read_b64 v[{R+4*k}:{R+4*k+1}], v238 offset:{off}')
        a(f'ds_read_b64 v[{R+4*k+2}:{R+4*k+3}], v238 offset:{off+L_XT-L_XH-1440}')
    for k in range(3):
        c = 4*stage if w3 else 4*stage+1+k
        K=112+4*(k if w3 else 0)
        T=48+16*k; acc=ACC+4*k
        a(f's_waitcnt lgkmcnt({4-2*k})')
        for p in range(2):
            a(f'''v_lshlrev_b32 v{T+4*p}, 16, v{R+4*k+p}
            v_and_b32 v{T+4*p+1}, 0xffff0000, v{R+4*k+p}
            v_lshlrev_b32 v{T+4*p+2}, 16, v{R+4*k+2+p}
            v_and_b32 v{T+4*p+3}, 0xffff0000, v{R+4*k+2+p}''')
        for p in range(2):
            a(f'v_pk_fma_f32 v[{T+4*p}:{T+4*p+1}], v[{T+4*p}:{T+4*p+1}], v[{K}:{K+1}], v[{T+4*p+2}:{T+4*p+3}] op_sel:[0,1,0] op_sel_hi:[1,1,1]')
        for p in range(2):
            a(f'v_pk_fma_f32 v[{T+4*p}:{T+4*p+1}], v[{acc+2*p}:{acc+2*p+1}], v[{K}:{K+1}], v[{T+4*p}:{T+4*p+1}] op_sel_hi:[1,0,1]')
        for p in range(2):
            a(f'v_pk_mul_f32 v[{T+4*p+2}:{T+4*p+3}], v[{T+4*p}:{T+4*p+1}], v[{K+2}:{K+3}] op_sel_hi:[1,0]')
        O=T+8
        a(f'''v_cvt_pk_bf16_f32 v{O}, v{T}, v{T+1}
        v_cvt_pk_bf16_f32 v{O+1}, v{T+4}, v{T+5}
        v_cvt_pk_bf16_f32 v{O+2}, v{T+2}, v{T+3}
        v_cvt_pk_bf16_f32 v{O+3}, v{T+6}, v{T+7}
        s_add_u32 s6, s48, {stage*1310720+(c-4*stage)*327680}
        s_addc_u32 s7, s49, 0
        v_permlane16_swap_b32 v{O}, v{O+2}
        v_permlane16_swap_b32 v{O+1}, v{O+3}''')
        vm.op(f'global_store_dwordx4 v{239+(k if w3 else 0)}, v[{O}:{O+3}], s[6:7] sc1','st%d'%stage)

def conv_consts(g, w3):
    a=g.a
    n=3 if w3 else 1
    a(f'v_mov_b32 v28, {L_MOD}' if w3 else f's_lshl_b32 s6, {sW}, 2\ns_add_u32 s6, s6, {L_MOD}\nv_mov_b32 v28, s6')
    for k in range(n):
        a(f'ds_read2_b32 v[{112+4*k}:{113+4*k}], v28 offset0:{16+k} offset1:{32+k}')
        a(f'ds_read_b32 v{114+4*k}, v28 offset:{4*(24+k)}')

def stage_h(g):
    a=g.a
    a('s_waitcnt lgkmcnt(0)\ns_barrier')
    g.stamp(12)
    for i in range(3):
        a(f'ds_read_b128 v[{32+4*i}:{35+4*i}], v242 offset:{4096*i}')
        a(f'ds_read2_b32 v[{44+2*i}:{45+2*i}], v243 offset0:{i} offset1:{8+i}')
    for i in range(3):
        a(f's_waitcnt lgkmcnt({4-2*i})')
        for p in range(4):
            r=32+4*i+p; t=50+2*(p&1)
            a(f'''v_lshlrev_b32 v{t}, 16, v{r}
            v_and_b32 v{t+1}, 0xffff0000, v{r}
            v_pk_fma_f32 v[{t}:{t+1}], v[{t}:{t+1}], v[{44+2*i}:{45+2*i}], v[{44+2*i}:{45+2*i}] op_sel:[0,1,0] op_sel_hi:[1,1,0]
            v_cvt_pk_bf16_f32 v{r}, v{t}, v{t+1}''')
    for i in range(3): a(f'ds_write_b128 v242, v[{32+4*i}:{35+4*i}] offset:{4096*i}')
    a('s_waitcnt lgkmcnt(0)\ns_barrier')
    g.stamp(13)

def flag_addrs(g, base, n, R):
    a=g.a
    for i in range(4):
        a(f'v_add_u32 v{R+i}, {64*i}, v1\nv_min_u32 v{R+i}, {n-1}, v{R+i}\nv_lshlrev_b32 v{R+i}, 7, v{R+i}\nv_add_u32 v{R+i}, {base}, v{R+i}')
    return [(f'v{R+i}',0) for i in range(4)]

def check(g, vm, tag, regs_addrs, sleep=2):
    a=g.a; L=g.lab('cf'); D=g.lab('cfd')
    if tag in vm.q: vm.wait(tag)
    keep=list(vm.q)
    a(f's_mov_b32 s90, 0\n{L}:')
    for i,(r,t) in enumerate(regs_addrs):
        if i==0: a(f'v_cmp_ne_u32 vcc, {sTAG}, v{r}')
        else: a(f'v_cmp_ne_u32 s[88:89], {sTAG}, v{r}\ns_nop 0\ns_or_b64 vcc, vcc, s[88:89]')
    a(f's_nop 0\ns_cbranch_vccz {D}\ns_add_u32 s90, s90, 1\ns_cmp_gt_u32 s90, {POLL_MAX}\ns_cbranch_scc1 {D}\ns_sleep {sleep}')
    for r,t in regs_addrs: a(t)
    a(f's_waitcnt vmcnt(0)\ns_branch {L}\n{D}:')
    vm.q=keep

def w3_prep(g):
    a=g.a
    for k in range(3):
        a(f'''v_add_u32 v20, {64*k}, v1
        v_mul_u32_u24 v21, 0x5556, v20
        v_lshrrev_b32 v21, 16, v21
        v_mul_u32_u24 v22, 3, v21
        v_sub_u32 v22, v20, v22
        v_add_u32 v22, s51, v22
        v_min_u32 v22, 639, v22
        v_lshrrev_b32 v23, 2, v22
        v_mul_u32_u24 v23, {QS}, v23
        v_lshl_add_u32 v23, v21, 6, v23
        v_and_b32 v22, 3, v22
        v_lshl_add_u32 v{204+k}, v22, 4, v23''')
    a(f'''v_bfe_u32 v20, v1, 2, 3
    v_mul_u32_u24 v21, 0x5556, v20
    v_lshrrev_b32 v21, 16, v21
    v_mul_u32_u24 v21, 3, v21
    v_sub_u32 v21, v20, v21
    v_add_u32 v21, s51, v21
    v_min_u32 v21, 639, v21
    v_lshlrev_b32 v209, 1, v21
    v_and_b32 v22, 3, v1
    v_mul_u32_u24 v22, 3840, v22
    v_add_u32 v21, v21, v22
    v_lshrrev_b32 v22, 5, v1
    v_mul_u32_u24 v22, 640, v22
    v_add_u32 v21, v21, v22
    v_add3_u32 v22, v21, v22, 0
    v_lshlrev_b32 v207, 3, v21
    v_add_u32 v207, {MODP}, v207
    v_lshlrev_b32 v208, 3, v22
    v_add_u32 v208, {MODP+1280*8}, v208
    v_lshrrev_b32 v214, 2, v1
    v_lshlrev_b32 v214, 2, v214
    v_add_u32 v214, {L_MOD}, v214''')
    flag_addrs(g,F1,256,210)

def modsum(g, r):
    a=g.a
    a(f'''v_add_f32_dpp v{r}, v{r}, v{r} quad_perm:[1,0,3,2] row_mask:0xf bank_mask:0xf
    v_cmp_lt_u32 vcc, 31, v1
    v_add_f32_dpp v{r}, v{r}, v{r} quad_perm:[2,3,0,1] row_mask:0xf bank_mask:0xf
    v_cvt_pk_bf16_f32 v{r}, v{r}, v{r}
    v_lshlrev_b32 v{r}, 16, v{r}
    v_add_f32 v{r+1}, 1.0, v{r}
    v_cvt_pk_bf16_f32 v{r+1}, v{r+1}, v{r+1}
    v_lshlrev_b32 v{r+1}, 16, v{r+1}
    v_cndmask_b32 v{r}, v{r}, v{r+1}, vcc''')

def w3_preconv(g, vm):
    a=g.a
    if g.o.get('p1st',1): g.poll1(F1,256,37,46,g.o.get('sl1',4))
    g.poll([(f'v{210+i}',0) for i in range(4)],40,sleep=g.o.get('sl2',4))
    g.stamp(6)
    def dma(src,dst,tag):
        a(f's_add_u32 s6, s48, {src}\ns_addc_u32 s7, s49, 0')
        for i in range(12):
            if i and i%3==0: a('s_add_u32 s6, s6, 4096\ns_addc_u32 s7, s7, 0')
            a(f's_mov_b32 m0, {dst+1024*i}')
            vm.op(f'global_load_lds_dwordx4 v{204+i%3}, s[6:7] sc1',tag)
    g0=f'global_load_dwordx2 v[128:129], v207, {pWS} sc1'
    vm.op(g0,'g0')
    dma(XH,L_XH+1440,'xh')
    vm.op(f'global_load_ushort v132, v209, {pD}','D')
    dma(XT,L_XT,'xt')
    check(g,vm,'g0',[(129,g0)])
    modsum(g,128)
    a('ds_write_b32 v214, v128')
    vm.wait('xh')
    g.stamp(7)

def w3_mid(g, vm):
    a=g.a
    g1=f'global_load_dwordx2 v[130:131], v208, {pWS} sc1'
    check(g,vm,'g1',[(131,g1)])
    modsum(g,130)
    a('''v_lshlrev_b32 v132, 16, v132
    v_mul_f32 v132, v132, v130
    ds_write_b32 v214, v130 offset:64
    s_mov_b32 exec_hi, 0
    ds_write_b32 v214, v132 offset:128
    s_mov_b64 exec, -1
    s_waitcnt lgkmcnt(0)''')

def conv_wave(g, w3):
    a=g.a; o=g.o; vm=VM(a)
    if w3: w3_preconv(g,vm)
    stage_h(g)
    look=o.get('look3',14) if w3 else o.get('look',10)
    fw=f'global_load_dword v124, v244, {pWS} sc1'
    vm.op(fw,'fw1')
    if w3: vm.op(f'global_load_dwordx2 v[130:131], v208, {pWS} sc1','g1')
    wl=[wload(vm,0,i,f'a[{4*i}:{4*i+3}]') for i in range(60)]
    npost=o.get('w1_post',8); ne=o.get('w1_early',12)
    seq=conv_seq(w3,0); ex={}
    if not w3:
        c=o.get('fw1_at',24)
        ex[c]=[lambda: check(g,vm,'fw1',[(124,fw)])]
        spread(wl[:ne],c+1,len(seq),ex)
    mfma_stream(vm,seq,POOL,look,ex,None)
    g.stamp(14)
    if w3:
        w3_mid(g,vm)
        check(g,vm,'fw1',[(124,fw)])
        for x in wl[:ne]: emit(vm,x)
    a('s_barrier')
    conv_consts(g,w3)
    conv_epilogue(g,vm,w3,0)
    g.stamp(15)
    seq=conv_seq(w3,1); ex={}
    n=len(seq); sig=n*o.get('f2e_at',8)//16
    spread(wl[ne:60-npost],0,n*o.get('w1_end',14)//16,ex)
    def signal():
        vm.wait('st0'); a('s_barrier')
        if w3: g.flag_store(F2E,sWG,126)
    ex.setdefault(sig,[]).append(signal)
    f2=f'global_load_dword v124, v245, {pWS} sc1'
    ex.setdefault(n-1,[]).append((f2,'f2e'))
    mfma_stream(vm,seq,POOL,look,ex,None)
    g.stamp(16)
    conv_epilogue(g,vm,w3,1)
    check(g,vm,'f2e',[(124,f2)])

def uv_producer(g):
    a=g.a; vm=VM(a)
    a(f'''v_lshlrev_b32 v20, 3, v0
    v_add_u32 v20, {MODP+1920*8}, v20
    s_mul_i32 s6, s62, 640
    s_add_u32 s6, s6, {MODP+3200*8}
    v_min_u32 v24, 79, v0
    v_lshl_add_u32 v24, v24, 3, s6''')
    for k in range(1,4): a(f'v_add_u32 v{20+k}, {3840*8*k}, v20\nv_add_u32 v{24+k}, {3840*8*k}, v24')
    a(f'v_mov_b32 v28, {MODP+3*3840*8+3839*8}')
    g.poll([('v28',0)],30,width=2,tagoff=1,sleep=16)
    L=[]
    for i in range(5):
        for k in range(4):
            r=32+8*i+2*k
            L.append((r+1,f'global_load_dwordx2 v[{r}:{r+1}], v{20+k}, s[12:13] offset:{2048*i-4096} sc1'))
    for k in range(4):
        r=72+2*k; L.append((r+1,f'global_load_dwordx2 v[{r}:{r+1}], v{24+k}, {pWS} sc1'))
    a('s_add_u32 s12, s48, 4096\ns_addc_u32 s13, s49, 0')
    L=[(r,t.replace('offset:4096','offset:4096')) for r,t in L]
    L=[(r,t.replace('s[12:13] offset:4096','s[14:15]')) for r,t in L]
    a('s_add_u32 s14, s48, 8192\ns_addc_u32 s15, s49, 0')
    for r,t in L: vm.op(t,'mp')
    check(g,vm,'mp',L,sleep=8)
    a(f'v_lshlrev_b32 v20, 1, v0\nv_add_u32 v20, {L_C2}, v20')
    for i in range(6):
        r=32+8*i
        a(f'''v_add_f32 v{r}, v{r}, v{r+2}
        v_add_f32 v{r+4}, v{r+4}, v{r+6}
        v_add_f32 v{r}, v{r}, v{r+4}
        v_cvt_pk_bf16_f32 v{r}, v{r}, v{r}''')
    for i in range(2,5):
        r=32+8*i
        a(f'''v_lshlrev_b32 v{r+1}, 16, v{r}
        v_add_f32 v{r+1}, 1.0, v{r+1}
        v_cvt_pk_bf16_f32 v{r+1}, v{r+1}, v{r+1}''')
    a(f'v_cmp_le_u32 vcc, 128, v0\ns_nop 1\nv_cndmask_b32 v49, v48, v49, vcc')
    for i in range(5): a(f'ds_write_b16 v20, v{32+8*i+(1 if i>=2 else 0)} offset:{512*i}')
    a(f'''v_lshlrev_b32 v72, 16, v72
    s_lshl_b32 s6, s62, 11
    s_add_u32 s6, s6, {UV}
    v_min_u32 v21, 79, v0
    v_lshl_add_u32 v21, v21, 2, s6
    global_store_dword v21, v72, {pWS} offset:1536 sc1
    v_lshrrev_b32 v22, 4, v1
    v_bfe_u32 v23, v1, 3, 1
    v_mul_u32_u24 v5, 1280, v23
    v_sub_u32 v5, {L_C2+1280}, v5
    v_lshl_add_u32 v5, v22, 3, v5
    v_mul_u32_u24 v23, 768, v23
    v_lshl_add_u32 v23, v22, 4, v23
    s_mul_i32 s7, {sW}, 192
    s_add_u32 s6, s6, s7
    v_add_u32 v23, s6, v23
    s_waitcnt vmcnt(0) lgkmcnt(0)
    s_barrier''')
    XO=64; ACCU=40
    def uvr(s):
        b=XO+4*(s%6)
        a(f'ds_read_b64 v[{b}:{b+1}], v5 offset:{64*s}\nds_read_b64 v[{b+2}:{b+3}], v5 offset:{64*s+32}')
    for s in range(4): uvr(s)
    for s in range(20):
        b=XO+4*(s%6)
        a(f's_waitcnt lgkmcnt({min(6,2*(19-s))})')
        for T in range(3):
            c=ACCU+4*T
            a(f'v_mfma_f32_16x16x32_bf16 v[{c}:{c+3}], a[{12*s+4*T}:{12*s+4*T+3}], v[{b}:{b+3}], {"0" if s==0 else f"v[{c}:{c+3}]"}')
            if T==0 and s+4<20: uvr(s+4)
    a('s_mov_b32 exec_lo, 0x01010101\ns_mov_b32 exec_hi, 0x01010101')
    for T in range(3): a(f'global_store_dwordx4 v23, v[{ACCU+4*T}:{ACCU+4*T+3}], {pWS} offset:{64*T} sc1')
    a('s_mov_b64 exec, -1\ns_waitcnt vmcnt(0)')
    g.signal_lds(3,4,FUV,'s62',24)

def side_rest(g):
    a=g.a; vm=VM(a); L=g.lab('nouv')
    a(f'''v_min_u32 v20, {255-NCONV}, v1
    v_lshlrev_b32 v20, 7, v20
    v_add_u32 v20, {FW1+128*NCONV}, v20''')
    g.poll([('v20',0)],21,sleep=8)
    for i in range(60-g.o.get('w1_post',8)): emit(vm, wload(vm,0,i,f'a[{4*i}:{4*i+3}]'))
    a(f's_cmp_lt_u32 {sWG}, 248\ns_cbranch_scc1 {L}')
    a('s_mov_b32 s12, s64\ns_mov_b32 s13, s65')
    for i in range(60-g.o.get('w1_post',8),60): emit(vm, wload(vm,0,i,f'a[{4*i}:{4*i+3}]'))
    a('s_mov_b32 s64, s12\ns_mov_b32 s65, s13')
    uv_producer(g)
    a(f'{L}:')
    a(f'''v_min_u32 v20, {NCONV-1}, v0
    v_lshlrev_b32 v20, 7, v20
    v_add_u32 v20, {F2E}, v20''')
    g.poll1(F2E,NCONV,37,22,16)
    g.poll([('v20',0)],21,sleep=4)

def rest(g):
    a=g.a
    if g.stop=='p1':
        a(f'''s_add_u32 s6, s51, {sW}
        s_mul_i32 s6, s6, 34816
        s_add_u32 s6, s6, {DBG}''')
        dump_lds(g,'s59',17408,'s6')
        a(f's_add_u32 s59, s59, {KRB}\ns_add_u32 s6, s6, 17408')
        dump_lds(g,'s59',17408,'s6')
        a('s_branch L_FIN')
        g.w3_p1(); a('s_branch L_FIN')
        g.side_w(); a('s_branch L_FIN')
        return
    conv_wave(g,False); a('s_branch L_POST')
    g.w3_p1()
    a(f's_cmp_ge_u32 {sWG}, {NCONV}\ns_cbranch_scc1 L_SIDE_R')
    conv_wave(g,True); a('s_branch L_POST')
    g.side_w()
    a('L_SIDE_R:'); side_rest(g)
    a('L_POST:')
    g.stamp(17)
    if g.stop=='conv':
        a('s_waitcnt vmcnt(0)')
        epoch_update(g); return
    from phases3 import gemms
    gemms(g)

def epoch_update(g):
    a=g.a; L=g.lab('ep')
    a(f'''s_or_b32 s6, {sWG}, {sW}
    s_cmp_lg_u32 s6, 0
    s_cbranch_scc1 {L}
    v_mov_b32 v20, {EPOCH}
    v_mov_b32 v21, {sTAG}
    s_mov_b64 exec, 1
    global_store_dword v20, v21, {pWS} sc1
    s_mov_b64 exec, -1
    {L}:''')
```

```python
from layout import *
from gen import *
from phases2 import VM, wload, emit, spread, epoch_update, NA, check

U1=16; V1=28; ACC=40; XO=64; SG=96; PF=112; ST=116
NB=60-NA
def w2reg(i): return f'v[{128+4*i}:{131+4*i}]' if i<NA else f'a[{4*(i-NA)}:{4*(i-NA)+3}]'

def x_dma(g, vm, stage):
    a=g.a
    a(f'''s_mul_i32 s10, s61, 40960
    s_add_u32 s10, s10, {stage*1310720}
    s_mul_i32 s11, s62, 5120
    s_add_u32 s11, s11, s10
    s_add_u32 s11, s11, {X1}
    s_add_u32 s8, s48, s11
    s_addc_u32 s9, s49, 0
    s_add_u32 s10, s10, {X1S}
    s_add_u32 s6, s48, s10
    s_addc_u32 s7, s49, 0
    s_lshl_b32 s10, {sW}, 10
    s_add_u32 m0, s10, {L_XP0 if stage==0 else L_XP1}''')
    vm.op('global_load_lds_dwordx4 v3, s[8:9] sc1','xp')
    a(f's_mov_b32 m0, {(L_XP0 if stage==0 else L_XP1)+4096-2048}\nv_add_u32 v4, 2048, v2')
    vm.op('global_load_lds_dwordx4 v4, s[8:9] offset:2048 sc1','xp')
    for r in range(10):
        if r: a('s_add_u32 s6, s6, 4096\ns_addc_u32 s7, s7, 0')
        a(f's_add_u32 m0, s10, {(L_XS0 if stage==0 else L_XS1)+4096*r}')
        vm.op('global_load_lds_dwordx4 v3, s[6:7] sc1',f'xr{r}')

def stats_publish(g, vm, stage):
    a=g.a
    for T in range(5): a(f'ds_read_b64_tr_b16 v[{XO+16+2*T}:{XO+17+2*T}], v10 offset:{1024*T+(0 if stage==0 else L_XP1-L_XP0)}')
    a(f'''v_mov_b32 v{ST}, 0
    v_mov_b32 v{ST+1}, 0
    v_mov_b32 v{ST+2}, 0x3f803f80
    s_lshl_b32 s6, s63, 9
    s_add_u32 s6, s6, {STG+stage*131072}
    s_and_b32 s7, {sW}, 1
    s_lshl_b32 s7, s7, 8
    s_add_u32 s6, s6, s7
    v_add_u32 v4, s6, v2''')
    return
def stats_publish2(g, vm, stage, nyoung):
    a=g.a
    a(f's_waitcnt lgkmcnt({nyoung})')
    for i in range(10):
        a(f'v_dot2c_f32_bf16 v{ST}, v{XO+16+i}, v{ST+2}')
        a(f'v_dot2c_f32_bf16 v{ST+1}, v{XO+16+i}, v{XO+16+i}')
    a(f'''s_nop 2
    v_permlane16_swap_b32 v{ST}, v{ST+1}
    v_add_f32 v{ST}, v{ST}, v{ST+1}
    v_mov_b32 v{ST+1}, v{ST}
    v_mov_b32 v{ST+2}, {sTAG}
    v_mov_b32 v{ST+3}, {sTAG}
    v_permlane32_swap_b32 v{ST}, v{ST+1}
    v_add_f32 v{ST}, v{ST}, v{ST+1}
    v_mov_b32 v{ST+1}, v{ST}
    v_permlane16_swap_b32 v{ST}, v{ST+1}
    s_mov_b64 exec, 0xffff''')
    vm.op(f'global_store_dwordx4 v4, v[{ST}:{ST+3}], {pWS} sc1','stp')
    a('s_mov_b64 exec, -1')

def stats_gather_items(stage):
    return [(f'global_load_dwordx4 v[{SG+8*L+4*p}:{SG+8*L+4*p+3}], v11, {pWS} offset:{512*p+256*L} sc1','sg') for L in range(2) for p in range(2)]
def stats_use(g, vm, stage):
    a=g.a
    check(g,vm,'sg',[(SG+4*i+2,t) for i,(t,_) in enumerate(stats_gather_items(stage))],sleep=0)
    s0,q0,s1,q1=SG,SG+1,SG+8,SG+9
    a(f'''v_pk_add_f32 v[{s0}:{q0}], v[{s0}:{q0}], v[{SG+4}:{SG+5}]
    v_pk_add_f32 v[{s1}:{q1}], v[{s1}:{q1}], v[{SG+12}:{SG+13}]
    v_permlane16_swap_b32 v{s0}, v{q0}
    v_permlane16_swap_b32 v{s1}, v{q1}
    v_add_f32 v{s0}, v{s0}, v{q0}
    v_add_f32 v{s1}, v{s1}, v{q1}
    v_permlane32_swap_b32 v{s0}, v{s1}
    v_add_f32 v{s0}, v{s0}, v{s1}
    v_mov_b32 v{q0}, v{s0}
    v_permlane16_swap_b32 v{s0}, v{q0}
    v_mul_f32 v{s0}, 0x3acccccd, v{s0}
    v_mul_f32 v{q0}, 0x3acccccd, v{q0}
    v_fma_f32 v{q0}, -v{s0}, v{s0}, v{q0}
    v_max_f32 v{q0}, 0, v{q0}
    v_cvt_pk_bf16_f32 v{s1}, -v{s0}, v{q0}
    v_and_b32 v{q0}, 0xffff0000, v{s1}
    v_lshlrev_b32 v{ST}, 16, v{s1}
    v_add_f32 v{q0}, 0x3727c5ac, v{q0}
    v_cvt_pk_bf16_f32 v{q0}, v{q0}, v{q0}
    v_lshlrev_b32 v{q0}, 16, v{q0}
    v_sqrt_f32 v{q0}, v{q0}
    v_mov_b32 v{ST+2}, v{ST}
    v_cvt_pk_bf16_f32 v{q0}, v{q0}, v{q0}
    v_lshlrev_b32 v{q0}, 16, v{q0}
    v_rcp_f32 v{ST+1}, v{q0}
    v_permlane32_swap_b32 v{ST}, v{ST+2}
    v_mov_b32 v{ST+3}, v{ST+1}
    v_permlane32_swap_b32 v{ST+1}, v{ST+3}''')

def flag_load(reg, addr): return f'global_load_dword v{reg}, v{addr}, {pWS} sc1'
def check_flag(g, vm, tag, reg, addr):
    check(g,vm,tag,[(reg,flag_load(reg,addr))])

def flag_by_w3(g, base, idx, vt):
    a=g.a; L=g.lab('fw')
    a(f's_cmp_lg_u32 {sW}, 3\ns_cbranch_scc1 {L}')
    g.flag_store(base,idx,vt); a(f'{L}:')

def g1_loop(g, vm, stage, extras, bars, pre, wwait):
    a=g.a
    LA=2
    def reads(s):
        if s in bars:
            vm.wait(*bars[s]); a('s_barrier')
        b=XO+8*(s%4) if s%4!=2 and s%4!=3 else XO+8*(s%4)
        for L in range(2):
            for h in range(2):
                a(f'ds_read_b64_tr_b16 v[{b+4*L+2*h}:{b+4*L+2*h+1}], v{8+L} offset:{2048*s+1024*h}')
    reads(0); reads(1)
    pre(8)
    for s in range(20):
        b=XO+8*(s%4)
        if s in wwait and any(t in vm.q for t in wwait[s]): vm.wait(*wwait[s])
        a(f's_waitcnt lgkmcnt({4 if s<19 else 0})')
        n=0
        for T in range(3):
            for L in range(2):
                c=ACC+8*T+4*L
                a(f'v_mfma_f32_16x16x32_bf16 v[{c}:{c+3}], a[{12*s+4*T}:{12*s+4*T+3}], v[{b+4*L}:{b+4*L+3}], {"0" if s==0 else f"v[{c}:{c+3}]"}')
                if n==0 and s+LA<20: reads(s+LA)
                if 6*s+n in extras: emit(vm, extras[6*s+n])
                n+=1

def g1_epilogue(g, vm, stage):
    a=g.a
    a(f'''s_mul_i32 s10, s61, 96
    s_mul_i32 s11, s62, 12
    s_add_u32 s10, s10, s11
    s_mul_i32 s11, {sW}, 3
    s_add_u32 s10, s10, s11
    s_lshl_b32 s10, s10, 10
    s_add_u32 s10, s10, {HB+stage*32*96*1024}
    s_add_u32 s6, s48, s10
    s_addc_u32 s7, s49, 0
    s_mov_b32 s8, 0xbfb8aa3b''')
    for T in range(3):
        P=[(ACC+8*T+4*L+2*p, U1+4*T+2*p, V1+4*T+2*p, ST+2*L, XO+8*(T&1)+4*L+2*p) for L in range(2) for p in range(2)]
        for c,u,v,m,t in P: a(f'v_pk_fma_f32 v[{c}:{c+1}], v[{u}:{u+1}], v[{m}:{m+1}], v[{c}:{c+1}] op_sel_hi:[1,0,1]')
        for c,u,v,m,t in P: a(f'v_pk_fma_f32 v[{c}:{c+1}], v[{c}:{c+1}], v[{m}:{m+1}], v[{v}:{v+1}] op_sel:[0,1,0] op_sel_hi:[1,1,1]')
        for c,u,v,m,t in P: a(f'v_pk_mul_f32 v[{t}:{t+1}], v[{c}:{c+1}], s[8:9] op_sel_hi:[1,0]')
        for c,u,v,m,t in P: a(f'v_exp_f32 v{t}, v{t}\nv_exp_f32 v{t+1}, v{t+1}')
        for c,u,v,m,t in P: a(f'v_pk_add_f32 v[{t}:{t+1}], v[{t}:{t+1}], 1.0 op_sel_hi:[1,0]')
        for c,u,v,m,t in P: a(f'v_rcp_f32 v{t}, v{t}\nv_rcp_f32 v{t+1}, v{t+1}')
        for c,u,v,m,t in P: a(f'v_pk_mul_f32 v[{t}:{t+1}], v[{t}:{t+1}], v[{c}:{c+1}]')
        O=XO+16+4*T
        for i,(c,u,v,m,t) in enumerate(P): a(f'v_cvt_pk_bf16_f32 v{O+i}, v{t}, v{t+1}')
        vm.op(f'global_store_dwordx4 v2, v[{O}:{O+3}], s[6:7] offset:{1024*T} sc1',f'H{stage}')

HBUF=32; A2=4*NB
def h_loads(g, stage):
    out=[]
    for s in range(12):
        L=[]
        if s==0:
            L.append(f'''s_mul_i32 s10, s61, 96
            s_mul_i32 s11, {sW}, 24
            s_add_u32 s10, s10, s11
            s_lshl_b32 s10, s10, 10
            s_add_u32 s10, s10, {HB+stage*32*96*1024+4096}
            s_add_u32 s68, s48, s10
            s_addc_u32 s69, s49, 0''')
        elif s%4==0: L.append('s_add_u32 s68, s68, 8192\ns_addc_u32 s69, s69, 0')
        for k in range(2):
            r=HBUF+8*s+4*k
            L.append((f'global_load_dwordx4 v[{r}:{r+3}], v2, s[68:69] offset:{((2*s+k)%8)*1024-4096} sc1',f'h{stage}_{s}'))
        out.append(L)
    return out

def g2_consts(g):
    L=[]
    for k in range(1,4):
        L.append(f's_add_u32 s6, {sW}, {k}\ns_and_b32 s6, s6, 3\ns_mul_i32 s6, s6, 6144\ns_add_u32 s6, s6, {L_RED}\nv_add_u32 v{16+k}, s6, v2')
    L+= [f's_lshl_b32 s6, {sW}, 10\ns_add_u32 s7, s6, {L_RED+24576}\nv_add_u32 v16, s7, v2',
         f's_add_u32 s7, s6, {L_XP0}\nv_add_u32 v20, s7, v12\nv_xor_b32 v21, 32, v20',
         f's_mul_i32 s6, {sW}, 6144\ns_add_u32 s6, s6, {L_RED}\nv_add_u32 v23, s6, v2',
         f's_and_b32 s6, {sW}, 1\ns_lshl_b32 s6, s6, 12\ns_add_u32 s6, s6, {L_RED+24576}\nv_add_u32 v3, s6, v2',
         f's_mul_i32 s6, s61, {32*1280}\ns_mul_i32 s7, s62, 160\ns_add_u32 s6, s6, s7\nv_and_b32 v31, 15, v1',
         f'v_mul_u32_u24 v31, 1280, v31\nv_add_u32 v31, s6, v31\nv_bfe_u32 v30, v1, 4, 1',
         f'v_mul_u32_u24 v30, {16*1280}, v30\nv_lshrrev_b32 v24, 5, v1\nv_lshl_add_u32 v30, v24, 4, v30',
         f's_lshl_b32 s7, {sW}, 5\nv_add3_u32 v30, v30, s7, v31\nv_lshrrev_b32 v24, 4, v1',
         f's_and_b32 s7, {sW}, 1\ns_mul_i32 s7, s7, {16*1280}\ns_add_u32 s7, s7, 128\nv_lshl_add_u32 v24, v24, 3, s7',
         f'v_add_u32 v31, v31, v24']
    return L

def g2_loop(g, vm, stage, order, extras):
    a=g.a
    xo=(L_XP1-L_XP0)*stage
    def prep(s):
        b=HBUF+8*s
        tags=[f'h{stage}_{s}']+[f'w1_{i}' for i in range(5*s,5*s+5)]
        if any(t in vm.q for t in tags): vm.wait(*tags)
        a(f'v_swap_b32 v{b+2}, v{b+4}\nv_swap_b32 v{b+3}, v{b+5}')
    prep(order[0])
    wr=[]
    for k in range(1,4):
        for L in range(2): wr.append(f'ds_write_b128 v{16+k}, a[{A2+8*k+4*L}:{A2+8*k+4*L+3}] offset:{3072*L+1024*(3-k)}')
    for L in range(2): wr.append(f'ds_write_b128 v16, a[{A2+32+4*L}:{A2+35+4*L}] offset:{4096*L}')
    for i,s in enumerate(order):
        b=HBUF+8*s; n=0
        for T in ((1,2,3,4,0) if i==11 else range(5)):
            for L in range(2):
                c=A2+8*T+4*L
                a(f'v_mfma_f32_16x16x32_bf16 a[{c}:{c+3}], {w2reg(5*s+T)}, v[{b+4*L}:{b+4*L+3}], {"0" if i==0 else f"a[{c}:{c+3}]"}')
                if n==6 and i<11: prep(order[i+1])
                if i==10 and n==0:
                    a(f'''ds_read_b64_tr_b16 v[24:25], v20 offset:{xo}
                    ds_read_b64_tr_b16 v[26:27], v21 offset:{xo}
                    ds_read_b64_tr_b16 v[28:29], v22 offset:{4096+xo}''')
                if i==11 and n>=5: a(wr.pop(0))
                if 10*i+n in extras: emit(vm, extras[10*i+n])
                n+=1
    for x in wr: a(x)

def g2_final(g, vm, stage, Y, P):
    a=g.a
    for i in range(8): a(f'v_accvgpr_read_b32 v{Y+i}, a{A2+i}')
    a('s_waitcnt lgkmcnt(0)\ns_barrier')
    for L in range(2):
        for k in range(3): a(f'ds_read_b128 v[{P+12*L+4*k}:{P+12*L+4*k+3}], v23 offset:{3072*L+1024*k}')
    for k in range(4): a(f'ds_read_b128 v[{P+24+4*k}:{P+27+4*k}], v3 offset:{1024*k}')
    def fin(acc, parts, x, gb, out):
        for p in parts:
            for h in range(2): a(f'v_pk_add_f32 v[{acc+2*h}:{acc+2*h+1}], v[{acc+2*h}:{acc+2*h+1}], v[{p+2*h}:{p+2*h+1}]')
        t=parts[0]
        for h in range(2): a(f'v_lshlrev_b32 v{t+2*h}, 16, v{x+h}\nv_and_b32 v{t+2*h+1}, 0xffff0000, v{x+h}')
        for h in range(2): a(f'v_pk_fma_f32 v[{acc+2*h}:{acc+2*h+1}], v[{acc+2*h}:{acc+2*h+1}], v[{gb+2*h}:{gb+2*h+1}], v[{t+2*h}:{t+2*h+1}]')
        for h in range(2): a(f'v_cvt_pk_bf16_f32 v{out+h}, v{acc+2*h}, v{acc+2*h+1}')
    O=Y+8
    a(f's_add_u32 s6, s44, {stage*1024*1280}\ns_addc_u32 s7, s45, 0')
    a('s_waitcnt lgkmcnt(7)')
    fin(Y,[P,P+4,P+8],24,4,O)
    a('s_waitcnt lgkmcnt(4)')
    fin(Y+4,[P+12,P+16,P+20],26,4,O+2)
    a(f'v_permlane16_swap_b32 v{O}, v{O+2}\nv_permlane16_swap_b32 v{O+1}, v{O+3}')
    vm.op(f'global_store_dwordx4 v30, v[{O}:{O+3}], s[6:7]','out')
    a('s_waitcnt lgkmcnt(0)')
    fin(P+24,[P+28,P+32,P+36],28,8,O+4)
    vm.op(f'global_store_dwordx2 v31, v[{O+4}:{O+5}], s[6:7]','out')

def gemms(g):
    a=g.a; o=g.o; vm=VM(a)
    npost=o.get('w1_post',8)
    vm.q=['w1','st1','st1','st1']
    a(f'''v_lshlrev_b32 v3, 4, v0
    v_min_u32 v13, {255-NCONV}, v1
    v_lshlrev_b32 v13, 7, v13
    v_add_u32 v13, {FW2+128*NCONV}, v13
    s_lshl_b32 s6, s62, 7
    s_add_u32 s6, s6, {FUV}
    v_mov_b32 v14, s6
    s_barrier''')
    g.stamp(18)
    x_dma(g,vm,0)
    vm.op(flag_load(PF,13),'fw2'); vm.op(flag_load(PF+1,14),'fuv')
    for i in range(60-npost,60): emit(vm,wload(vm,0,i,f'a[{4*i}:{4*i+3}]'))
    a(f'''v_lshrrev_b32 v12, 2, v1
    v_lshlrev_b32 v12, 6, v12
    v_bfe_u32 v4, v1, 4, 1
    v_lshl_add_u32 v12, v4, 5, v12
    v_and_b32 v4, 3, v1
    v_lshl_add_u32 v12, v4, 3, v12
    v_add_u32 v8, {L_XS0}, v12
    v_xor_b32 v9, 32, v8
    s_and_b32 s6, {sW}, 1
    s_lshl_b32 s6, s6, 5
    v_xor_b32 v10, s6, v12
    v_add_u32 v10, {L_XP0}, v10
    v_lshrrev_b32 v4, 4, v1
    v_lshlrev_b32 v11, 10, v4
    v_and_b32 v5, 15, v1
    v_lshl_add_u32 v11, v5, 4, v11
    s_lshl_b32 s6, s61, 12
    s_add_u32 s6, s6, {STG}
    v_add_u32 v11, s6, v11
    s_lshl_b32 s6, s62, 11
    s_add_u32 s6, s6, {UV}
    v_lshl_add_u32 v6, v4, 4, s6
    s_mul_i32 s7, {sW}, 192
    v_add_u32 v5, s7, v6
    v_and_b32 v15, 1, v1
    s_lshl_b32 s6, s61, 3
    s_lshl_b32 s7, {sW}, 1
    s_add_u32 s6, s6, s7
    v_add_u32 v15, s6, v15
    v_lshlrev_b32 v15, 7, v15
    v_add_u32 v15, {F3E}, v15''')
    vm.wait('xr1'); a('s_barrier')
    flag_by_w3(g,F2L,sWG,PF+2)
    g.stamp(19)
    w2=[wload(vm,1,i,w2reg(i)) for i in range(60)]
    stats_publish(g,vm,0)
    ex={}
    k=6*o.get('sg_at',15)
    def chk():
        check(g,vm,'fuv',[(PF,flag_load(PF,13)),(PF+1,flag_load(PF+1,14))])
        for T in range(3):
            vm.op(f'global_load_dwordx4 v[{U1+4*T}:{U1+4*T+3}], v5, {pWS} offset:{64*T} sc1','uv')
            vm.op(f'global_load_dwordx4 v[{V1+4*T}:{V1+4*T+3}], v5, {pWS} offset:{768+64*T} sc1','uv')
        a(f'v_min_u32 v13, {NCONV-1}, v0\nv_lshlrev_b32 v13, 7, v13\nv_add_u32 v13, {F2L}, v13')
    c0=o.get('uv_at',14)
    ex[c0]=[chk]
    na1=o.get('w2a_loop',22)
    spread(w2[:na1],c0+1,k,ex)
    ex.setdefault(k,[]).extend(stats_gather_items(0)+[(flag_load(PF,13),'f2l')])
    W1W={s:[f'w0_{3*s+2}'] for s in range(20) if 3*s+2>=60-npost}
    g1_loop(g,vm,0,ex,{4:['xr4'],10:['xr9']},lambda n: stats_publish2(g,vm,0,n),W1W)
    g.stamp(20)
    check_flag(g,vm,'f2l',PF,13)
    a('s_barrier')
    x_dma(g,vm,1)
    for x in w2[na1:NA]: emit(vm,x)
    a(f'v_add_u32 v8, {L_XS1-L_XS0}, v8\nv_add_u32 v9, {L_XS1-L_XS0}, v9')
    stats_use(g,vm,0)
    a('v_add_u32 v11, 131072, v11')
    g1_epilogue(g,vm,0)
    g.stamp(21)
    vm.wait('xr1'); a('s_barrier')
    g.stamp(22)
    stats_publish(g,vm,1)
    ex={}
    ex[k]=stats_gather_items(1)+[(flag_load(PF,15),'f3e')]
    def sig3e():
        vm.wait('H0'); a('s_barrier'); flag_by_w3(g,F3E,'s63',PF+2)
    ex.setdefault(6*o.get('f3e_at',10),[]).append(sig3e)
    nb1=o.get('w2b_loop',18)
    spread(w2[NA:NA+nb1],8,k,ex)
    spread(w2[NA+nb1:],k+1,120,ex)
    g1_loop(g,vm,1,ex,{4:['xr4'],10:['xr9']},lambda n: stats_publish2(g,vm,1,n),{})
    g.stamp(23)
    stats_use(g,vm,1)
    g1_epilogue(g,vm,1)
    g.stamp(24)
    if g.stop=='g1':
        a('s_waitcnt vmcnt(0)'); epoch_update(g); return
    check_flag(g,vm,'f3e',PF,15)
    if g.prof: a('v_mov_b32 v0, v7'); g.pv=0
    a(f'v_add_u32 v15, {F3L-F3E}, v15\nv_mov_b32 v22, v10\ns_lshl_b32 s6, {sW}, 6\nv_add_u32 v14, s6, v6')
    vm.op(f'global_load_dwordx4 v[8:11], v6, {pWS} offset:{1536+256} sc1','gb')
    vm.op(f'global_load_dwordx4 v[4:7], v14, {pWS} offset:1536 sc1','gb')
    for L in h_loads(g,0): emit(vm,L)
    vm.wait('H1'); a('s_barrier'); flag_by_w3(g,F3L,'s63',16)
    g.stamp(25)
    ex={}
    spread(g2_consts(g),2,40,ex)
    kc=o.get('f3l_chk',8)
    ex.setdefault(10*(kc-2),[]).append((flag_load(13,15),'f3l'))
    hl=h_loads(g,1)
    def hload(s):
        for k in range(2):
            r=HBUF+8*s+4*k; b={0:72,1:68,2:70}[s//4]
            vm.op(f'global_load_dwordx4 v[{r}:{r+3}], v2, s[{b}:{b+1}] offset:{((2*s+k)%8)*1024-4096} sc1',f'h1_{s}')
    order=list(range(12))
    def late_first():
        check_flag(g,vm,'f3l',13,15)
        a(hl[0][0])
        a('s_add_u32 s68, s68, 8192\ns_addc_u32 s69, s69, 0\ns_add_u32 s70, s68, 8192\ns_addc_u32 s71, s69, 0\ns_sub_u32 s72, s68, 8192\ns_subb_u32 s73, s69, 0')
    ex.setdefault(10*kc,[]).append(late_first)
    spread([(lambda s=s: hload(s)) for s in order[:5]],10*kc+1,118,ex)
    g2_loop(g,vm,0,order,ex)
    g.stamp(26)
    g2_final(g,vm,0,72,86)
    for s in order[5:]: hload(s)
    g.stamp(27)
    g2_loop(g,vm,1,order,{60:['s_barrier']})
    g.stamp(28)
    g2_final(g,vm,1,72,86)
    epoch_update(g)
```

```python
import sys, os
sys.path.insert(0, os.path.dirname(os.path.abspath(__file__)))
from asmlib import Asm
from layout import *

KNAME='adaLN_cond__ssm_conv_s4__dense_activation_silu__prompt_kernel'
sWG='s2'; sW='s3'
pX='s[16:17]'; pAre='s[18:19]'; pAim='s[20:21]'; pBre='s[22:23]'; pBim='s[24:25]'; pCre='s[26:27]'; pCim='s[28:29]'
pLdt='s[30:31]'; pD='s[32:33]'; pW1='s[36:37]'; pW2='s[38:39]'; pC='s[40:41]'; pWm='s[42:43]'; pOut='s[44:45]'; pWS='s[48:49]'
sTAG='s50'
LOG2E=0x3fb8aa3b; INV2PI=0x3e22f983
POLL_MAX=1<<16

class G:
    def __init__(self, stop=None, prof=False, opts=None):
        self.a=Asm(); self.stop=stop; self.prof=prof; self.n=0; self.o=opts or {}
        self.nprof=0; self.pv=7
    def lab(self, base):
        self.n+=1; return f'L_{base}_{self.n}'
    def stamp(self, idx):
        if not self.prof: return
        a=self.a
        a(f'''{'s_memtime' if self.o.get('cyc') else 's_memrealtime'} s[92:93]
        s_waitcnt lgkmcnt(0)
        v_writelane_b32 v{self.pv}, s92, {idx}''')
    def stamp2(self, idx):
        if self.o.get('fine'): self.stamp(idx)
    def stamp_flush(self):
        if not self.prof: return
        a=self.a
        if self.pv!=7: a(f's_waitcnt vmcnt(0)\nv_mov_b32 v7, v{self.pv}')
        a(f'''s_lshl_b32 s92, {sWG}, 2
        s_add_u32 s92, s92, {sW}
        s_lshl_b32 s92, s92, 8
        s_add_u32 s92, s92, {PROF}
        v_lshl_add_u32 v6, v1, 2, s92
        global_store_dword v6, v7, {pWS}''')
        if self.o.get('dbgwg') is not None:
            L=self.lab('dbg')
            a(f'''s_cmp_lg_u32 {sWG}, {self.o['dbgwg']}
            s_cbranch_scc1 {L}
            s_cmp_lg_u32 {sW}, {self.o.get('dbgw',0)}
            s_cbranch_scc1 {L}
            v_readlane_b32 s92, v7, 0
            v_and_b32 v6, 1, v1
            v_cmp_eq_u32 vcc, 1, v6
            v_subrev_u32 v7, s92, v7
            v_lshrrev_b32 v6, 1, v1
            v_lshlrev_b32 v6, 2, v6
            v_cmp_gt_u32 s[88:89], 32, v1
            s_nop 1
            s_and_b64 exec, vcc, s[88:89]
            global_store_dword v6, v7, s[46:47]
            s_mov_b64 exec, -1
            {L}:''')

    def poll1(self, base, n, mul, vt, sleep):
        a=self.a
        a(f'''s_mul_i32 s88, {sWG}, {mul}
        s_add_u32 s88, s88, 7
        s_and_b32 s88, s88, 127
        s_lshl_b32 s88, s88, 7
        s_add_u32 s88, s88, {base}
        v_mov_b32 v{vt}, s88''')
        self.poll([(f'v{vt}',0)], vt+1, sleep=sleep)
    def poll(self, addrs, tmp, width=1, tagoff=0, sleep=2, pre_sleep=0):
        a=self.a; L=self.lab('poll'); D=self.lab('polld')
        if pre_sleep: a(f's_sleep {pre_sleep}')
        a(f's_mov_b32 s90, 0\n{L}:')
        for i,(va,imm) in enumerate(addrs):
            r=tmp+i*width
            dst=f'v{r}' if width==1 else f'v[{r}:{r+width-1}]'
            sfx={1:'dword',2:'dwordx2',4:'dwordx4'}[width]
            a(f'global_load_{sfx} {dst}, {va}, {pWS} offset:{imm} sc1')
        a('s_add_u32 s90, s90, 1\ns_waitcnt vmcnt(0)')
        for i in range(len(addrs)):
            r=tmp+i*width+tagoff
            if i==0: a(f'v_cmp_ne_u32 vcc, {sTAG}, v{r}')
            else: a(f'v_cmp_ne_u32 s[88:89], {sTAG}, v{r}\ns_nop 0\ns_or_b64 vcc, vcc, s[88:89]')
        a(f'''s_nop 0
        s_cbranch_vccz {D}
        s_cmp_gt_u32 s90, {POLL_MAX}
        s_cbranch_scc1 {D}
        s_sleep {sleep}
        s_branch {L}
        {D}:''')
    def flag_store(self, base, idx_sgpr, vt):
        a=self.a
        a(f'''s_lshl_b32 s88, {idx_sgpr}, 7
        s_add_u32 s88, s88, {base}
        v_mov_b32 v{vt}, s88
        v_mov_b32 v{vt+1}, {sTAG}
        s_mov_b64 exec, 1
        global_store_dword v{vt}, v{vt+1}, {pWS} sc1
        s_mov_b64 exec, -1''')

    def prologue(self):
        a=self.a
        a(f'''s_cmp_ge_u32 {sWG}, 256
        s_cbranch_scc1 L_EXIT
        s_load_dwordx16 s[16:31], s[0:1], 0
        s_load_dwordx16 s[32:47], s[0:1], 64
        s_load_dwordx2 s[48:49], s[0:1], 128
        s_getpc_b64 s[4:5]
        v_and_b32 v1, 63, v0
        v_lshrrev_b32 v2, 6, v0
        v_lshlrev_b32 v3, 4, v0
        v_readfirstlane_b32 {sW}, v2
        v_lshlrev_b32 v2, 4, v1
        s_mul_i32 s6, {sWG}, 10240
        v_add_u32 v3, s6, v3
        s_lshl_b32 s7, {sW}, 10
        s_add_u32 s7, s7, {L_XT}
        s_mov_b32 m0, s7
        s_mul_i32 s51, {sWG}, 3''')
        if self.prof: a('v_mov_b32 v7, 0')
        for r in list(range(204,215))+list(range(234,246)): a(f'v_mov_b32 v{r}, 0')
        a(f'''s_waitcnt lgkmcnt(0)
        s_load_dword {sTAG}, {pWS}, {EPOCH}''')
        a(f'''global_load_lds_dwordx4 v3, {pX}
        s_add_u32 m0, s7, 4096
        v_add_u32 v3, 4096, v3
        global_load_lds_dwordx4 v3, {pX}
        s_cmp_ge_u32 {sW}, 2
        s_cbranch_scc1 L_X2
        s_add_u32 m0, s7, 8192
        v_add_u32 v3, 4096, v3
        global_load_lds_dwordx4 v3, {pX}
        L_X2:''')
        self.stamp(0)
        import phases2 as P2
        P2.gemm_ids(self)
        a(f'''s_cmp_eq_u32 {sW}, 3
        s_cbranch_scc1 L_W3_LOADS''')
        a(f'''s_cmp_ge_u32 {sWG}, {NCONV}
        s_cbranch_scc1 L_SIDE_LOADS
        s_add_u32 s52, s51, {sW}
        s_min_u32 s52, s52, 639
        s_mul_i32 s6, s52, 384
        v_lshl_add_u32 v4, v1, 2, s6
        v_lshl_add_u32 v5, v1, 1, s6
        s_lshr_b32 s7, s52, 1
        s_lshl_b32 s7, s7, 2
        s_load_dword s53, {pLdt}, s7''')
        for i,p in enumerate([pAre,pAim,pBre,pBim,pCre,pCim]):
            a(f'global_load_dword v{8+i}, v4, {p}')
        for i,p in enumerate([pAre,pAim,pBre,pBim,pCre,pCim]):
            a(f'global_load_ushort v{14+i}, v5, {p} offset:256')
        self.kgen_prep()
        P2.conv_setup(self,False)
        a('s_waitcnt vmcnt(12)\ns_branch L_P1')
        a('L_SIDE_LOADS:')
        self.code_prefetch()
        a(f's_waitcnt vmcnt({self.npf})\ns_branch L_P1')
        a('L_W3_LOADS:')
        P2.conv_setup(self,True)
        P2.w3_prep(self)
        a('s_waitcnt vmcnt(0)')
        a('L_P1:')
    def code_prefetch(self):
        a=self.a
        self.npf=0
        n=self.o.get('pf_lines',0)
        if not n: return
        k=(n+191)//192
        a(f'''v_lshlrev_b32 v6, 7, v1
        s_mul_i32 s6, {sW}, {k*64*128}
        v_add_u32 v6, s6, v6''')
        for i in range(k):
            a(f'v_min_u32 v20, {(n-1)*128}, v6\nglobal_load_dword v{250+i}, v20, s[4:5]')
            if i<k-1: a('v_add_u32 v6, 8192, v6')
        self.npf=k

    def p1(self):
        a=self.a
        a(f'''v_mov_b32 v20, 0
        v_mov_b32 v21, 0
        v_mov_b32 v22, 0
        v_mov_b32 v23, 0
        v_lshlrev_b32 v24, 4, v0
        v_cmp_gt_u32 vcc, 90, v0
        v_add_u32 v24, {L_XH}, v24
        v_mov_b32 v25, {L_CNT}
        v_cndmask_b32 v24, v25, v24, vcc
        ds_write_b128 v24, v[20:23]
        v_lshrrev_b32 v4, 5, v1
        s_lshl_b32 s6, {sW}, 1
        v_add_u32 v4, s6, v4
        v_mul_u32_u24 v5, 1280, v4
        v_and_b32 v6, 31, v1
        v_lshl_add_u32 v5, v6, 3, v5
        v_add_u32 v5, {L_XT}, v5
        v_bfe_u32 v26, v1, 2, 2
        v_mul_u32_u24 v26, 1280, v26
        v_lshrrev_b32 v27, 4, v1
        v_lshl_add_u32 v26, v27, 5, v26
        v_and_b32 v27, 3, v1
        v_lshl_add_u32 v26, v27, 3, v26
        v_add_u32 v26, {L_XT}, v26
        s_waitcnt lgkmcnt(0)
        s_barrier''')
        self.stamp(1)
        for i in range(5):
            a(f'ds_read_b64 v[{28+2*i}:{29+2*i}], v5 offset:{256*i}')
        a(f'''v_lshrrev_b32 v64, 2, v1
        v_mul_u32_u24 v64, {QS}, v64
        v_lshl_add_u32 v64, v27, 4, v64
        s_lshl_b32 s6, {sWG}, 6
        v_add_u32 v64, s6, v64
        v_mov_b32 v38, 0
        v_mov_b32 v39, 0
        v_mov_b32 v40, 0x3f803f80''')
        a(f'''s_lshl_b32 s6, {sW}, 7
        v_add_u32 v65, s6, v26''')
        for k in range(4):
            off=k*384
            a(f'ds_read_b64_tr_b16 v[{66+4*k}:{67+4*k}], v65 offset:{off}')
            a(f'ds_read_b64_tr_b16 v[{68+4*k}:{69+4*k}], v65 offset:{off+5120}')
        a('s_waitcnt lgkmcnt(8)')
        for i in range(10):
            a(f'v_dot2c_f32_bf16 v38, v{28+i}, v40')
            a(f'v_dot2c_f32_bf16 v39, v{28+i}, v{28+i}')
        a('''s_nop 2
        v_permlane16_swap_b32 v38, v39
        v_add_f32 v38, v38, v39
        v_add_f32_dpp v38, v38, v38 quad_perm:[1,0,3,2] row_mask:0xf bank_mask:0xf
        v_add_f32_dpp v38, v38, v38 quad_perm:[2,3,0,1] row_mask:0xf bank_mask:0xf
        v_add_f32_dpp v38, v38, v38 row_half_mirror row_mask:0xf bank_mask:0xf
        v_add_f32_dpp v38, v38, v38 row_mirror row_mask:0xf bank_mask:0xf
        v_mov_b32 v39, v38
        v_permlane16_swap_b32 v38, v39
        v_mul_f32 v38, 0x3acccccd, v38
        v_mul_f32 v39, 0x3acccccd, v39
        v_fma_f32 v39, -v38, v38, v39
        v_max_f32 v39, 0, v39
        v_cvt_pk_bf16_f32 v41, v38, v39
        v_and_b32 v39, 0xffff0000, v41
        v_lshlrev_b32 v38, 16, v41
        v_add_f32 v39, 0x3727c5ac, v39
        v_cvt_pk_bf16_f32 v39, v39, v39
        v_lshlrev_b32 v39, 16, v39
        v_sqrt_f32 v39, v39
        v_cvt_pk_bf16_f32 v39, v39, v39
        v_lshlrev_b32 v39, 16, v39
        v_rcp_f32 v39, v39
        v_lshlrev_b32 v4, 2, v4
        v_mul_f32 v38, -v38, v39''')
        a(f'''ds_write2_b32 v4, v39, v38 offset0:0 offset1:8 ; placeholder'''.replace('ds_write2_b32 v4, v39, v38 offset0:0 offset1:8 ; placeholder', f'v_add_u32 v4, {L_ST}, v4\nds_write2_b32 v4, v39, v38 offset0:0 offset1:8'))
        a(f'''s_waitcnt lgkmcnt(0)
        s_add_u32 {sTAG}, {sTAG}, 1
        s_barrier''')
        self.stamp(2)
        a(f'''s_cmp_eq_u32 {sW}, 3
        s_cbranch_scc1 L_W3_P1
        v_mov_b32 v4, {L_ST}
        ds_read_b128 v[44:47], v4
        ds_read_b128 v[48:51], v4 offset:16
        ds_read_b128 v[52:55], v4 offset:32
        ds_read_b128 v[56:59], v4 offset:48
        s_mul_i32 s6, {sW}, {16*QS}
        s_add_u32 s6, s6, {XH}
        v_add_u32 v65, s6, v64
        s_waitcnt lgkmcnt(0)''')
        for k in range(4):
            if k==3: a(f's_cmp_lg_u32 {sW}, 0\ns_cbranch_scc1 L_XH_3')
            for p in range(4):
                r=66+4*k+p
                a(f'''v_and_b32 v{85+2*(p&1)}, 0xffff0000, v{r}
                v_lshlrev_b32 v{84+2*(p&1)}, 16, v{r}
                v_pk_fma_f32 v[{84+2*(p&1)}:{85+2*(p&1)}], v[{84+2*(p&1)}:{85+2*(p&1)}], v[{44+2*p}:{45+2*p}], v[{52+2*p}:{53+2*p}]
                v_cvt_pk_bf16_f32 v{r}, v{84+2*(p&1)}, v{85+2*(p&1)}''')
            a(f'global_store_dwordx4 v65, v[{66+4*k}:{69+4*k}], {pWS} sc1')
            if k<3: a(f'v_add_u32 v65, {48*QS}, v65')
        a(f's_cmp_ge_u32 {sWG}, {NCONV}\ns_cbranch_scc1 L_SIDE_W\ns_waitcnt vmcnt(4)\ns_branch L_XH_DONE\nL_XH_3:\ns_cmp_ge_u32 {sWG}, {NCONV}\ns_cbranch_scc1 L_SIDE_W\ns_waitcnt vmcnt(3)\nL_XH_DONE:')
        self.stamp(3)

    def signal_lds(self, cnt, n, base, idx, vt):
        a=self.a; L=self.lab('sig')
        a(f'''v_mov_b32 v{vt}, {L_CNT+4*cnt}
        v_mov_b32 v{vt+1}, 1
        s_mov_b64 exec, 1
        ds_add_rtn_u32 v{vt}, v{vt}, v{vt+1}
        s_mov_b64 exec, -1
        s_waitcnt lgkmcnt(0)
        v_readfirstlane_b32 s88, v{vt}
        s_cmp_lg_u32 s88, {n-1}
        s_cbranch_scc1 {L}''')
        self.flag_store(base, idx, vt)
        a(f'{L}:')

    def cmul(self, d, x, y):
        return [f'v_pk_mul_f32 v[{d}:{d+1}], v[{x}:{x+1}], v[{y}:{y+1}] op_sel_hi:[0,1]',
                f'v_pk_fma_f32 v[{d}:{d+1}], v[{x}:{x+1}], v[{y}:{y+1}], v[{d}:{d+1}] op_sel:[1,1,0] op_sel_hi:[1,0,1] neg_lo:[1,0,0]']
    def kgen(self):
        a=self.a
        ROW=272; YB=0; XB=YB+32*ROW
        vWA=4
        vRA=5
        a(f'''s_mul_i32 s59, {sW}, {KSA}
        s_mov_b32 m0, s59
        v_and_b32 v20, 31, v1
        v_mul_u32_u24 v20, {ROW}, v20
        v_lshrrev_b32 v21, 5, v1
        v_lshl_add_u32 v20, v21, 4, v20
        v_add_u32 v{vRA}, s59, v20
        s_bitcmp1_b32 s52, 0
        s_cselect_b32 s6, 0, 16
        s_lshl_b32 s6, s53, s6
        s_and_b32 s6, s6, 0xffff0000
        v_mov_b32 v20, {hex(LOG2E)}
        v_mul_f32 v20, s6, v20
        v_exp_f32 v20, v20
        v_mov_b32 v21, 0x3f80
        v_cvt_pk_bf16_f32 v20, v20, v20
        ds_write_addtid_b32 v21 offset:{YB}
        v_lshlrev_b32 v6, 16, v20''')
        vDT=6
        EA=20; BR=21; W=22; T=24
        Y=32
        Z1=64; Z2=66; Z4=68; P256=70; P512=72; P1024=74
        X=76
        CV=118
        TM=126
        ACC=136
        OP=152
        cvn=[0]
        def emit_val(reg,row,isx):
            c=CV+(cvn[0]%8); cvn[0]+=1
            neg='-' if isx else ''
            return [f'v_cvt_pk_bf16_f32 v{c}, v{reg}, {neg}v{reg+1}', f'ds_write_addtid_b32 v{c} offset:{(XB if isx else YB)+row*ROW}']
        def direct(dst,e,t):
            import struct
            fe=hex(struct.unpack('<I',struct.pack('<f',float(e)))[0])
            m = (lambda d,s: f'v_mov_b32 v{d}, v{s}') if e==1 else (lambda d,s: f'v_mul_f32 v{d}, {fe}, v{s}')
            return [m(t,EA), m(t+1,BR), f'v_exp_f32 v{t}, v{t}', f'v_fract_f32 v{t+1}, v{t+1}',
                    f'v_cos_f32 v{dst}, v{t+1}', f'v_sin_f32 v{dst+1}, v{t+1}',
                    f'v_pk_mul_f32 v[{dst}:{dst+1}], v[{dst}:{dst+1}], v[{t}:{t+1}] op_sel_hi:[1,0]']
        def ilv(*seqs):
            out=[]; n=max(len(s) for s in seqs)
            for i in range(n):
                for s in seqs:
                    if i<len(s): out.append(s[i])
            return out
        yr=lambda j: Y+2*(j-1)
        xr=lambda i: X+2*i
        pend_mfma=[]
        for ch in range(3):
            S=[]; cvn[0]=0
            src=[8+i for i in range(6)] if ch<2 else [14+i for i in range(6)]
            up=(lambda d,s: f'v_and_b32 v{d}, 0xffff0000, v{s}') if ch==1 else (lambda d,s: f'v_lshlrev_b32 v{d}, 16, v{s}')
            S+= [up(EA,src[0]), up(BR,src[1]), up(T,src[2]), up(T+1,src[3]), up(T+2,src[4]), up(T+3,src[5])]
            S+= [f'v_pk_mul_f32 v[{EA}:{BR}], v[{EA}:{BR}], v[{vDT}:{vDT+1}] op_sel_hi:[1,0]',
                 f'v_pk_mul_f32 v[{T}:{T+1}], v[{T}:{T+1}], v[{vDT}:{vDT+1}] op_sel_hi:[1,0]',
                 f'v_mul_f32 v{EA}, {hex(LOG2E)}, v{EA}', f'v_mul_f32 v{BR}, {hex(INV2PI)}, v{BR}']
            S+= self.cmul(xr(0),T+2,T)
            S+= ilv(direct(yr(8),64,TM+2), direct(Z1,1,TM+4))
            S+= ilv(self.cmul(yr(16),yr(8),yr(8)), self.cmul(Z2,Z1,Z1))
            S+= ilv(self.cmul(P256,yr(16),yr(16)), self.cmul(Z4,Z2,Z2))
            S+= ilv(self.cmul(P512,P256,P256), self.cmul(yr(1),Z4,Z4))
            S+= ilv(self.cmul(P1024,P512,P512), self.cmul(yr(2),yr(1),yr(1)))
            S+= ilv(self.cmul(yr(4),yr(2),yr(2)), self.cmul(yr(3),yr(2),yr(1)))
            head=S; S=[]
            E=[]
            for j in (1,2,8,16,4,3): E+=emit_val(yr(j),j,False)
            M=[(yr(5),yr(4),yr(1)),(yr(6),yr(4),yr(2)),(yr(7),yr(4),yr(3))]
            M+=[(xr(1),xr(0),Z1),(xr(2),xr(0),Z2),(xr(4),xr(0),Z4)]
            M+=[(yr(8+k),yr(8),yr(k)) for k in range(1,8)]
            M+=[(xr(3),xr(1),Z2),(xr(5),xr(1),Z4),(xr(6),xr(2),Z4),(xr(8),xr(0),P256),(xr(12),xr(0),P512),(xr(16),xr(0),P1024)]
            M+=[(xr(7),xr(3),Z4),(xr(9),xr(2),P256),(xr(10),xr(4),P256),(xr(11),xr(6),P256),(xr(13),xr(4),P512),(xr(14),xr(8),P512)]
            M+=[(xr(15),xr(10),P512),(xr(17),xr(8),P1024),(xr(18),xr(12),P1024),(xr(19),xr(14),P1024),(xr(20),xr(16),P1024)]
            rowof={}
            for j in range(1,17): rowof[yr(j)]=(j,False)
            for i in range(21): rowof[xr(i)]=(i,True)
            E+=emit_val(xr(0),0,True)
            body=[]; wq=[]; pm=list(pend_mfma); nb=[0]
            def flush():
                if pm: body.append(pm.pop(0))
                body.extend(wq[:5])
                body.extend(wq[5:]); wq.clear(); nb[0]+=1
                if ch==0 and nb[0]==self.o.get('sig_at',5): body.append('@SIG')
            def put(pair):
                body.append(pair[0]); wq.append(pair[1])
                if len(wq)==8: flush()
            for i in range(0,len(E),2): put(E[i:i+2])
            allM=[(d,x,y,rowof[d]) for d,x,y in M]+[(TM+2*(k%4),yr(16),yr(k+1),(17+k,False)) for k in range(15)]
            for i in range(0,len(allM),2):
                grp=allM[i:i+2]
                body+=ilv(*[self.cmul(d,x,y) for d,x,y,_ in grp])
                for d,x,y,(row,isx) in grp: put(emit_val(d,row,isx))
            flush()
            body.extend(pm)
            if pend_mfma: head.append('s_waitcnt lgkmcnt(0)')
            for x in head+body:
                if x=='@SIG':
                    a('s_waitcnt vmcnt(0)')
                    self.signal_lds(0,4,F1,sWG,T)
                    self.stamp(4)
                else: a(x)
            self.stamp2(6+ch)
            a('s_waitcnt lgkmcnt(0)')
            for s in range(8):
                a(f'ds_read_b128 v[{OP+8*s}:{OP+8*s+3}], v{vRA} offset:{XB+32*s}')
                a(f'ds_read_b128 v[{OP+8*s+4}:{OP+8*s+7}], v{vRA} offset:{YB+32*s}')
            pend_mfma=[f'v_mfma_f32_32x32x16_bf16 v[{ACC}:{ACC+15}], v[{OP+8*s}:{OP+8*s+3}], v[{OP+8*s+4}:{OP+8*s+7}], {"0" if (ch==0 and s==0) else f"v[{ACC}:{ACC+15}]"}' for s in range(8)]
        for s in range(8):
            a(f's_waitcnt lgkmcnt({min(15,14-2*s)})' if s<7 else 's_waitcnt lgkmcnt(0)')
            a(pend_mfma[s])
        self.stamp2(9)
        for r in range(12): a(f'v_cvt_pk_bf16_f32 v{ACC+r}, v{ACC+r}, v{ACC+r}')
        a(f'''ds_write_b128 v216, v[{ACC}:{ACC+3}]
        s_mov_b32 exec_hi, 0
        ds_write_b128 v217, v[{ACC+4}:{ACC+7}] offset:1024
        ds_write_b32 v219, v{ACC+8} offset:2048
        ds_write_b32 v219, v{ACC+9} offset:{2048+128}
        ds_write_b32 v219, v{ACC+10} offset:{2048+256}
        ds_write_b32 v219, v{ACC+11} offset:{2048+384}
        s_not_b64 exec, exec
        ds_write_b64 v218, v[{ACC+4}:{ACC+5}] offset:1536
        ds_write_b64 v218, v[{ACC+6}:{ACC+7}] offset:{1536+256}
        ds_write_b32 v219, v{ACC+8} offset:2560
        s_mov_b64 exec, -1
        v_mov_b32 v20, 0
        s_waitcnt lgkmcnt(0)
        ds_write_b32 v233, v20''')
        GV={}; r=32
        for g in range(16):
            GV[g]=r; r+= 4 if g<4 else 2
        for g in range(16):
            v=GV[g]
            if g<2:
                a(f'ds_read2_b32 v[{v}:{v+1}], v220 offset0:{128*g} offset1:{128*g+1}')
                a(f'ds_read_b32 v{v+2}, v220 offset:{512*g+8}')
            elif g<4:
                for k in range(3): a(f'ds_read_b32 v{v+k}, v{221+3*(g-2)+k}')
            elif g<8: a(f'ds_read2_b32 v[{v}:{v+1}], v227 offset0:{32*(g-4)} offset1:{32*(g-4)+1}')
            else: a(f'ds_read2_b32 v[{v}:{v+1}], v230 offset0:{16*(g-8)} offset1:{16*(g-8)+1}')
        self.stamp2(10)
        EO=80
        def perms(g):
            v=GV[g]; e=EO+2*g
            if g<4:
                a(f'v_perm_b32 v{e}, v{v+1}, v{v+2}, s60')
                a(f'v_perm_b32 v{e+1}, v{v}, v{v+1}, s60')
            else:
                sel=228 if g<8 else 231
                a(f'v_perm_b32 v{e}, v{v+1}, v{v}, v{sel}')
                a(f'v_perm_b32 v{e+1}, v{v+1}, v{v}, v{sel+1}')
        def writes(gs):
            for grp in range(2):
                a(f's_add_u32 m0, s59, {0 if grp==0 else KMB}')
                for g in gs:
                    for sig in range(8):
                        if (sig>>1)&1!=grp: continue
                        off=kbase(sig,0)-(KMB if grp else 0)+4*(957+(sig>>1)-64*g)
                        a(f'ds_write_addtid_b32 v{EO+2*g+(0 if sig&1 else 1)} offset:{off}')
        a('s_mov_b32 s60, 0x05040100\ns_waitcnt lgkmcnt(8)')
        for g in range(8): perms(g)
        a('s_waitcnt lgkmcnt(0)')
        for g in range(8,16): perms(g)
        writes(range(8))
        self.stamp2(11)
        writes(range(8,16))
        self.stamp(5)

    def kgen_prep(self):
        a=self.a
        a(f'''s_mul_i32 s6, {sW}, {TTS}
        s_add_u32 s6, s6, {L_TT+16}
        v_and_b32 v20, 31, v1
        v_lshrrev_b32 v21, 5, v1
        v_lshlrev_b32 v216, 5, v20
        v_lshl_add_u32 v216, v21, 4, v216
        v_add_u32 v216, s6, v216
        v_lshl_add_u32 v217, v20, 4, s6
        v_lshl_add_u32 v218, v20, 3, s6
        v_lshl_add_u32 v219, v20, 2, s6
        v_lshlrev_b32 v20, 1, v1
        v_sub_u32 v20, 125, v20
        v_lshl_add_u32 v220, v20, 2, s6
        s_sub_u32 s7, s6, 4
        v_mov_b32 v22, s7
        v_mov_b32 v23, 0
        ds_write_b32 v22, v23
        s_add_u32 s7, s6, {4*(128-0x4300)&0xffffffff}''')
        def idx(dst,tap0):
            a(f'''v_add_u32 v{dst}, {tap0}, v20
            v_cvt_f32_u32 v{dst}, v{dst}
            v_cvt_pk_bf16_f32 v{dst}, v{dst}, 0''')
        for g in (2,3):
            for k in range(3):
                d=221+3*(g-2)+k
                idx(d,128*g+k); a(f'v_lshl_add_u32 v{d}, v{d}, 2, s7')
        for g,d in ((4,227),(8,230)):
            idx(d,128*g); idx(d+1,128*g+2); idx(d+2,128*g+1)
            a(f'''v_sub_u32 v{d+1}, v{d+1}, v{d}
            v_sub_u32 v{d+2}, v{d+2}, v{d}
            v_lshl_add_u32 v{d}, v{d}, 2, s7
            v_mul_u32_u24 v{d+1}, 0x0404, v{d+1}
            v_mul_u32_u24 v{d+2}, 0x0404, v{d+2}
            v_lshl_add_u32 v{d+1}, v{d+2}, 16, v{d+1}
            v_add_u32 v{d+1}, 0x01000100, v{d+1}
            v_add_u32 v{d+2}, 0x01000100, v{d+2}''')
        a(f'''v_lshrrev_b32 v21, 3, v1
        v_and_b32 v22, 1, v21
        v_lshrrev_b32 v23, 2, v21
        v_lshl_add_u32 v22, v22, 1, v23
        v_mul_u32_u24 v22, 4128, v22
        v_bfe_u32 v23, v21, 1, 1
        v_mul_u32_u24 v23, {KRB}, v23
        v_add_u32 v22, v22, v23
        v_lshrrev_b32 v21, 1, v21
        v_and_b32 v23, 7, v1
        v_min_u32 v23, 6, v23
        v_add_u32 v21, v21, v23
        v_lshl_add_u32 v22, v21, 2, v22
        s_mul_i32 s6, {sW}, {KSA}
        s_add_u32 s6, s6, {16+4*1021}
        v_add_u32 v233, s6, v22''')

    def relayout_tiles(self, vtr, ntiles, ldsoff, rowbytes, dstregs, addr_fn):
        a=self.a
        for t in range(ntiles):
            r=dstregs+4*t
            a(f'ds_read_b64_tr_b16 v[{r}:{r+1}], v{vtr} offset:{ldsoff+32*t}')
            a(f'ds_read_b64_tr_b16 v[{r+2}:{r+3}], v{vtr} offset:{ldsoff+32*t+16*rowbytes}')
        for t in range(ntiles):
            r=dstregs+4*t
            addr_fn(t)
            a(f's_waitcnt lgkmcnt({min(15,2*(ntiles-1-t))})')
            a(f'global_store_dwordx4 v2, v[{r}:{r+3}], s[6:7] sc1')

    def w3_p1(self):
        a=self.a
        a('L_W3_P1:')
        a(f'v_add_u32 v65, {XT}, v64')
        for half in range(2):
            for k in range(5):
                u=5*half+k
                a(f'ds_read_b64_tr_b16 v[{28+4*k}:{29+4*k}], v26 offset:{128*u}')
                a(f'ds_read_b64_tr_b16 v[{30+4*k}:{31+4*k}], v26 offset:{128*u+5120}')
            for k in range(5):
                a(f's_waitcnt lgkmcnt({8-2*k})')
                a(f'global_store_dwordx4 v65, v[{28+4*k}:{31+4*k}], {pWS} sc1')
                a(f'v_add_u32 v65, {16*QS}, v65')
        def wm():
            for i in range(20):
                a(f'global_load_dwordx4 v[{96+4*i}:{99+4*i}], v4, {pWm}')
                if i<19: a('v_add_u32 v4, 7680, v4')
        a(f'''s_cmp_ge_u32 {sWG}, 240
        s_cbranch_scc1 L_W3_NOMOD
        s_mul_i32 s57, {sWG}, 1093
        s_lshr_b32 s57, s57, 16
        s_mul_i32 s6, s57, 60
        s_sub_u32 s58, {sWG}, s6
        s_mul_i32 s6, s57, 320
        v_lshrrev_b32 v4, 3, v1
        v_mad_u32_u24 v5, v4, 40, s6''')
        for i in range(5):
            a(f'global_load_dwordx2 v[{8+2*i}:{9+2*i}], v5, {pC} offset:{8*i}')
        a(f'''s_mov_b32 s6, {20*7680}
        v_mul_lo_u32 v4, v4, s6
        v_and_b32 v5, 7, v1
        v_lshl_add_u32 v4, v5, 4, v4
        s_mul_i32 s6, s57, {160*7680}
        s_lshl_b32 s7, s58, 7
        s_add_u32 s6, s6, s7
        v_add_u32 v4, s6, v4
        s_cmp_ge_u32 s58, {self.o.get('urgent',20)}
        s_cbranch_scc1 L_W3_LATE''')
        wm()
        self.stamp2(8)
        a('s_waitcnt vmcnt(25)')
        self.signal_lds(0,4,F1,sWG,48)
        self.stamp2(9)
        a('s_branch L_W3_MOD\nL_W3_LATE:')
        self.stamp2(8)
        a('s_waitcnt vmcnt(5)')
        self.signal_lds(0,4,F1,sWG,48)
        self.stamp2(9)
        wm()
        a('L_W3_MOD:\ns_waitcnt vmcnt(20)')
        self.stamp(3)
        for i in range(0,20,4):
            R=[(8+i//2+k, 176+i+2*k, 48+2*k) for k in range(2)]
            for s_,d,t in R: a(f'v_lshlrev_b32 v{d}, 16, v{s_}\nv_and_b32 v{d+1}, 0xffff0000, v{s_}')
            for s_,d,t in R: a(f'v_mul_f32 v{t}, 0xbfb8aa3b, v{d}\nv_mul_f32 v{t+1}, 0xbfb8aa3b, v{d+1}')
            for s_,d,t in R: a(f'v_exp_f32 v{t}, v{t}\nv_exp_f32 v{t+1}, v{t+1}')
            for s_,d,t in R: a(f'v_add_f32 v{t}, 1.0, v{t}\nv_add_f32 v{t+1}, 1.0, v{t+1}')
            for s_,d,t in R: a(f'v_rcp_f32 v{t}, v{t}\nv_rcp_f32 v{t+1}, v{t+1}')
            for s_,d,t in R: a(f'v_pk_mul_f32 v[{t}:{t+1}], v[{t}:{t+1}], v[{d}:{d+1}]')
            for s_,d,t in R: a(f'v_cvt_pk_bf16_f32 v{t}, v{t}, v{t+1}')
            for s_,d,t in R: a(f'v_lshlrev_b32 v{d}, 16, v{t}\nv_and_b32 v{d+1}, 0xffff0000, v{t}')
        for j in range(8): a(f'v_mov_b32 v{196+j}, 0')
        a(f'''v_bfe_u32 v4, v1, 3, 1
        v_cmp_eq_u32 vcc, 1, v4
        v_bfe_u32 v5, v1, 4, 1
        v_lshl_add_u32 v4, v5, 1, v4
        v_lshrrev_b32 v5, 5, v1
        v_lshl_add_u32 v4, v5, 2, v4
        v_and_b32 v5, 7, v1
        v_lshl_add_u32 v4, v5, 3, v4
        s_mul_i32 s6, s57, {3840*8}
        s_lshl_b32 s7, s58, 9
        s_add_u32 s6, s6, s7
        s_add_u32 s6, s6, {MODP}
        v_lshl_add_u32 v4, v4, 3, s6''')
        for i in range(20):
            if i==0: self.stamp2(10)
            a(f's_waitcnt vmcnt({19-i})')
            if i==0 : self.stamp2(11)
            if i==19 : self.stamp2(5)
            for p in range(4):
                r=96+4*i+p
                a(f'''v_lshlrev_b32 v{60+2*(p&1)}, 16, v{r}
                v_and_b32 v{61+2*(p&1)}, 0xffff0000, v{r}
                v_pk_fma_f32 v[{196+2*p}:{197+2*p}], v[{60+2*(p&1)}:{61+2*(p&1)}], v[{176+(i&~1)}:{177+(i&~1)}], v[{196+2*p}:{197+2*p}] op_sel:[0,{i&1},0] op_sel_hi:[1,{i&1},1]''')
        for j in range(4): a(f'v_permlane32_swap_b32 v{196+j}, v{200+j}')
        for j in range(4): a(f'v_add_f32 v{196+j}, v{196+j}, v{200+j}')
        for j in range(2): a(f'v_permlane16_swap_b32 v{196+j}, v{198+j}')
        for j in range(2): a(f'v_add_f32 v{196+j}, v{196+j}, v{198+j}')
        a(f'''v_add_f32_dpp v196, v196, v196 row_ror:8 row_mask:0xf bank_mask:0xf
        v_add_f32_dpp v197, v197, v197 row_ror:8 row_mask:0xf bank_mask:0xf
        v_cndmask_b32 v196, v196, v197, vcc
        v_mov_b32 v197, {sTAG}
        global_store_dwordx2 v4, v[196:197], {pWS} sc1
        s_branch L_W3_P1D
        L_W3_NOMOD:
        s_waitcnt vmcnt(0)''')
        self.signal_lds(0,4,F1,sWG,48)
        a('L_W3_P1D:')
        self.stamp(4)

    def side_w(self):
        a=self.a
        a(f'''L_SIDE_W:
        s_sub_u32 s52, {sWG}, {NCONV}
        s_mul_i32 s52, s52, 3
        s_add_u32 s52, s52, {sW}
        s_lshl_b32 s56, {sW}, 15
        v_lshrrev_b32 v20, 3, v1
        v_and_b32 v21, 7, v1
        v_lshlrev_b32 v21, 4, v21
        v_mul_u32_u24 v22, 1280, v20
        v_add_u32 v22, v22, v21
        v_mul_u32_u24 v20, 3072, v20
        v_add_u32 v20, v20, v21
        v_lshrrev_b32 v4, 2, v1
        v_lshlrev_b32 v4, 7, v4
        v_and_b32 v5, 3, v1
        v_lshl_add_u32 v4, v5, 3, v4
        v_add_u32 v4, s56, v4''')
        def issue(which):
            div,mul,row,ptr,va = (24,2731,3072,pW1,20) if which==0 else (10,6554,1280,pW2,22)
            for r in range(4):
                a(f'''s_add_u32 s8, s52, {126*r}
                s_min_u32 s8, s8, 479
                s_mul_i32 s9, s8, {mul}
                s_lshr_b32 s{70+8*which+2*r}, s9, 16
                s_mul_i32 s9, s{70+8*which+2*r}, {div}
                s_sub_u32 s{71+8*which+2*r}, s8, s9
                s_mul_i32 s8, s{70+8*which+2*r}, {32*row}
                s_lshl_b32 s9, s{71+8*which+2*r}, 7
                s_add_u32 s8, s8, s9
                v_add_u32 v21, s8, v{va}''')
                for i in range(4):
                    a(f's_add_u32 m0, s56, {16384*which+4096*r+1024*i}')
                    a(f'global_load_lds_dwordx4 v21, {ptr}' if i==0 else f'v_add_u32 v21, {8*row}, v21\nglobal_load_lds_dwordx4 v21, {ptr}')
        def conv(which):
            for r in range(4):
                ks=70+8*which+2*r; nq=ks+1
                a('s_waitcnt vmcnt(12)')
                self.stamp2(6+r+4*which)
                def addr1(t):
                    a(f'''s_lshl_b32 s8, s{nq}, 2
                    s_add_u32 s8, s8, {t}
                    s_mul_i32 s9, s8, 21846
                    s_lshr_b32 s9, s9, 16
                    s_mul_i32 s10, s9, {20*3072-3*1024}
                    s_lshl_b32 s8, s8, 10
                    s_add_u32 s8, s8, s10
                    s_mul_i32 s10, s{ks}, 3072
                    s_add_u32 s8, s8, s10
                    s_add_u32 s8, s8, {W1P}
                    s_add_u32 s6, s48, s8
                    s_addc_u32 s7, s49, 0''')
                def addr2(t):
                    a(f'''s_lshl_b32 s8, s{nq}, 2
                    s_add_u32 s8, s8, {t}
                    s_mul_i32 s9, s8, 13108
                    s_lshr_b32 s9, s9, 16
                    s_mul_i32 s10, s9, 5
                    s_sub_u32 s8, s8, s10
                    s_mul_i32 s10, s{ks}, 5462
                    s_lshr_b32 s10, s10, 16
                    s_sub_u32 s10, s8, s10
                    s_and_b32 s10, s10, 3
                    s_cmp_eq_u32 s8, 4
                    s_cselect_b32 s8, 4, s10
                    s_mul_i32 s9, s9, 240
                    s_add_u32 s8, s8, s9
                    s_mul_i32 s10, s{ks}, 5
                    s_add_u32 s8, s8, s10
                    s_lshl_b32 s8, s8, 10
                    s_add_u32 s8, s8, {W2P}
                    s_add_u32 s6, s48, s8
                    s_addc_u32 s7, s49, 0''')
                self.relayout_tiles(4,4,16384*which+4096*r,128,28+16*(r&1),addr1 if which==0 else addr2)
        issue(0)
        a('s_waitcnt vmcnt(16)')
        self.signal_lds(0,4,F1,sWG,24)
        self.stamp2(3)
        conv(0)
        issue(1)
        a('s_waitcnt vmcnt(16)')
        self.signal_lds(1,3,FW1,sWG,24)
        self.stamp(4)
        conv(1)
        a('s_waitcnt vmcnt(0)')
        self.signal_lds(2,3,FW2,sWG,24)
        self.stamp(5)

    def finish(self):
        a=self.a
        a('L_FIN:')
        self.stamp(31)
        self.stamp_flush()
        a('L_EXIT:\ns_endpgm')

    def build(self):
        from phases2 import rest
        a=self.a
        self.prologue(); self.p1(); self.kgen()
        rest(self)
        self.finish()
        n=a.fix()
        e=sum(a.check_waits(env={'s2':wg,'s3':w}) for wg in (0,213,214,240) for w in range(4))
        al=a.align()
        hdr=open(os.path.join(os.path.dirname(os.path.abspath(__file__)),'header.txt')).read()
        s=hdr+f'; @launch grid=(256,1,1) block=(256,1,1) lds={LDS_BYTES}\n'
        s+=f'.amdgcn_target "amdgcn-amd-amdhsa--gfx950"\n.text\n.globl {KNAME}\n.p2align 8\n.type {KNAME},@function\n{KNAME}:\n'
        s+=a.text()
        s+=f'''.section .rodata,"a"
.p2align 6
.amdhsa_kernel {KNAME}
  .amdhsa_next_free_vgpr 512
  .amdhsa_next_free_sgpr 102
  .amdhsa_accum_offset 256
  .amdhsa_group_segment_fixed_size 0
  .amdhsa_kernarg_size 136
  .amdhsa_user_sgpr_count 2
  .amdhsa_user_sgpr_kernarg_segment_ptr 1
  .amdhsa_system_sgpr_workgroup_id_x 1
.end_amdhsa_kernel
'''
        print(f'[gen] {len(a.L)} lines, {n} hazard nops, {e} wait errors, align {al}', file=sys.stderr)
        return s

if __name__=='__main__':
    import argparse
    ap=argparse.ArgumentParser(); ap.add_argument('-o',default='out.s'); ap.add_argument('--stop'); ap.add_argument('--prof',action='store_true'); ap.add_argument('--opt',action='append',default=[])
    x=ap.parse_args()
    opts={k:int(v,0) for k,v in (o.split('=') for o in x.opt)}
    open(x.o,'w').write(G(x.stop,x.prof,opts).build())
```
